```python
import torch

def _softmax(x, axis=-1):
    return torch.softmax(x, dim=axis)
def _gelu(x):
    return torch.nn.functional.gelu(x, approximate="tanh")
def _silu(x):
    return torch.nn.functional.silu(x)
def _sigmoid(x):
    return torch.sigmoid(x)
def _layernorm(x, axis=-1, eps=1e-5):
    m = x.mean(dim=axis, keepdim=True)
    v = x.var(dim=axis, keepdim=True, unbiased=False)
    return (x - m) / torch.sqrt(v + eps)
def _scatter_add(tgt, idx, src, axis=0):
    return tgt.clone().index_add_(axis, idx, src)
def _segment_sum(src, seg, n):
    out = torch.zeros((n,) + src.shape[1:], dtype=src.dtype)
    return out.index_add_(0, seg, src)
def _pad(x, pw):
    flat = tuple(v for pair in reversed(pw) for v in pair)
    return torch.nn.functional.pad(x, flat)

kernel_name = 'standalone__gqa_softmax__sampling'

def setup_inputs():

    _w = (lambda a: (lambda t: t.to(torch.bfloat16) if t.is_floating_point() else t)(torch.as_tensor(a)))
    B, Hq, Hkv, Sq, Sk, D = 16, 32, 16, 4, 4096, 128
    return {
        "q": _w((lambda *s: torch.randn(*s, dtype=torch.bfloat16) * 0.8)(B, Hq, Sq, D)),
        "k": _w((lambda *s: torch.randn(*s, dtype=torch.bfloat16) * 0.8)(B, Hkv, Sk, D)),
        "v": _w((lambda *s: torch.randn(*s, dtype=torch.bfloat16) * 0.05)(B, Hkv, Sk, D)),
    }

def reference(q, k, v):
    B, Hq, Sq, D = q.shape
    Hkv = k.shape[1]
    rep = Hq // Hkv
    k = (lambda x, n, axis: torch.repeat_interleave(x, n, dim=axis))(k, rep, axis=1)
    v = (lambda x, n, axis: torch.repeat_interleave(x, n, dim=axis))(v, rep, axis=1)
    scale = D ** -0.5
    scores = torch.einsum("bhqd,bhkd->bhqk", q, k) * scale
    p = _softmax(scores, axis=-1)
    return torch.einsum("bhqk,bhkd->bhqd", p, v)
```

```python
import sys, struct

KN = "standalone__gqa_softmax__sampling_kernel"
HEADER = """; Kernarg layout for this problem (48 bytes, ptrs only, base s[0:1]):
"""

def f2u(x):
    return struct.unpack("<I", struct.pack("<f", x))[0]

def gen(W=20, pol="nt", stamps=0, lds=65536, prio=0):
    L = []
    A = L.append
    R = 4
    SLOT = 16384
    NSLOT = 128
    NI = NSLOT * 16
    assert (15 + W) // 16 <= R - 2
    C = (128 ** -0.5) * 1.4426950408889634
    A(HEADER.rstrip())
    if stamps:
        A("; stamps=768")
    A(f"; @launch grid=(256,1,1) block=(192,1,1) lds={lds}")
    A('.amdgcn_target "amdgcn-amd-amdhsa--gfx950"')
    A(".text")
    A(f".globl {KN}\n.p2align 8\n.type {KN},@function\n{KN}:")
    A("  s_cmp_ge_u32 s2, 256")
    A("  s_cbranch_scc1 L_end")
    if stamps:
        A("  s_memrealtime s[40:41]")
        A("  s_load_dwordx2 s[44:45], s[0:1], 40")
    A("  s_load_dwordx4 s[4:7], s[0:1], 8          ; K, V")
    A("  s_load_dwordx2 s[16:17], s[0:1], 0        ; Q")
    A("  s_load_dwordx2 s[18:19], s[0:1], 24       ; out")
    A("  v_lshrrev_b32 v1, 6, v0")
    A("  v_and_b32 v0, 63, v0                      ; lane")
    A("  v_lshrrev_b32 v2, 4, v0                   ; g = lane >> 4")
    A("  v_readfirstlane_b32 s3, v1")
    A("  v_and_b32 v3, 15, v0                      ; i = lane & 15")
    A("  s_cmp_lg_u32 s3, 0")
    A("  s_cbranch_scc1 L_consumer")

    if prio:
        A(f"  s_setprio {prio}")
    for n in range(4):
        A(f"  v_add_u32 v4, {4*n}, v2")
        A("  v_xor_b32 v4, v4, v3")
        A("  v_lshlrev_b32 v4, 4, v4")
        A(f"  v_lshl_add_u32 v{8+n}, v2, 8, v4")
    for n in range(2):
        A(f"  v_add_u32 v4, {4*n}, v2")
        A("  v_lshlrev_b32 v4, 1, v4")
        A("  v_xor_b32 v4, v4, v3")
        A("  v_lshlrev_b32 v4, 4, v4")
        A(f"  v_lshl_add_u32 v{12+n}, v2, 8, v4")
    A("  s_lshr_b32 s21, s2, 12")
    A("  s_lshl_b32 s20, s2, 20")
    A("  s_mov_b32 s10, 0x100000")
    A("  s_mov_b32 s11, 0x20000")
    A("  s_mov_b32 s14, 0x100000")
    A("  s_mov_b32 s15, 0x20000")
    A("  s_mov_b32 s22, 0")
    A("  s_waitcnt lgkmcnt(0)")
    A("  s_add_u32 s8, s4, s20")
    A("  s_addc_u32 s9, s5, s21")
    A("  s_add_u32 s12, s6, s20")
    A("  s_addc_u32 s13, s7, s21")

    def body(first):
        for x in range(64):
            slot, i = x // 16, x % 16
            isv = slot & 1
            srd = "s[12:15]" if isv else "s[8:11]"
            vo = f"v{12 + (i & 1)}" if isv else f"v{8 + (i & 3)}"
            if i % 4 == 0:
                A(f"  s_mov_b32 m0, {slot*SLOT + (i//4)*4096}")
                A(f"  s_add_u32 s23, s22, {(slot//2)*SLOT + (i//4)*4096}")
            if not (first and x < W):
                A(f"  s_waitcnt vmcnt({W-1})")
            A(f"  buffer_load_dwordx4 {vo}, {srd}, s23 offen offset:{(i%4)*1024} {pol} lds")
            if (x - 15 - W) % 16 == 0 and not (first and x < 15 + W):
                A("  s_barrier")
        A(f"  s_add_u32 s22, s22, {2*SLOT}")
    body(True)
    A("L_load_loop:")
    body(False)
    A(f"  s_cmp_lg_u32 s22, {NSLOT//2*SLOT}")
    A("  s_cbranch_scc1 L_load_loop")
    n0 = (NI - 1 - 15 - W) // 16 + 1
    for n in range(n0, NSLOT):
        A(f"  s_waitcnt vmcnt({NI - 1 - (16*n + 15)})")
        A("  s_barrier")
    if stamps:
        A("  s_branch L_stamp")
    else:
        A("  s_endpgm")

    vQ, vK, vV, vO, vS, vP = 16, 32, 64, 96, 128, 136
    aK, aV = 140, 144
    vM, vL, vA, vT, vX, vMC = 152, 153, 154, 155, 156, 157
    A("L_consumer:")
    A("  s_sub_u32 s3, s3, 1")
    A("  s_lshl_b32 s24, s3, 13")
    A("  v_and_b32 v4, 7, v3")
    A("  v_lshlrev_b32 v4, 8, v4")
    A("  v_lshl_add_u32 v4, v2, 4, v4")
    A("  s_lshl_b32 s20, s2, 11")
    A("  s_mov_b32 s10, 2048")
    A("  s_mov_b32 s11, 0x20000")
    A("  s_mov_b32 s14, 2048")
    A("  s_mov_b32 s15, 0x20000")
    A("  s_waitcnt lgkmcnt(0)")
    A("  s_add_u32 s8, s16, s20")
    A("  s_addc_u32 s9, s17, 0")
    A("  s_add_u32 s12, s18, s20")
    A("  s_addc_u32 s13, s19, 0")
    for j in range(4):
        A(f"  buffer_load_dwordx4 v[{vQ+4*j}:{vQ+4*j+3}], v4, s[8:11], 0 offen offset:{64*j}")
    A("  v_lshl_add_u32 v5, v3, 8, s24")
    for j in range(4):
        A(f"  v_add_u32 v6, {4*j}, v2")
        A("  v_xor_b32 v6, v6, v3")
        A(f"  v_lshl_add_u32 v{aK+j}, v6, 4, v5")
    A("  v_lshrrev_b32 v5, 2, v0")
    A("  v_and_b32 v6, 7, v5")
    A("  v_lshlrev_b32 v6, 1, v6")
    A("  v_bfe_u32 v7, v0, 1, 1")
    A("  v_xor_b32 v6, v6, v7")
    A("  v_and_b32 v7, 1, v0")
    A("  v_lshlrev_b32 v7, 3, v7")
    A("  v_lshl_add_u32 v5, v5, 8, v7")
    A("  v_add_u32 v5, s24, v5")
    for db in range(8):
        A(f"  v_xor_b32 v7, {2*db}, v6")
        A(f"  v_lshl_add_u32 v{aV+db}, v7, 4, v5")
    for r in range(32):
        A(f"  v_mov_b32 v{vO+r}, 0")
    A(f"  v_mov_b32 v{vM}, 0xff800000")
    A(f"  v_mov_b32 v{vMC}, 0xff800000")
    A(f"  v_mov_b32 v{vL}, 0")
    A(f"  s_mov_b32 s25, {hex(f2u(C))}")
    A("  s_mov_b32 s26, 32")
    A("  s_waitcnt vmcnt(0)")

    def khalf(slot):
        A("  s_barrier")
        for t in range(2):
            for j in range(4):
                r = vK + 16*t + 4*j
                A(f"  ds_read_b128 v[{r}:{r+3}], v{aK+j} offset:{slot*SLOT + t*4096}")
        for t in range(2):
            for j in range(4):
                r = vK + 16*t + 4*j
                A(f"  s_waitcnt lgkmcnt({7 - 4*t - j})")
                c = "0" if j == 0 else f"v[{vS+4*t}:{vS+4*t+3}]"
                A(f"  v_mfma_f32_16x16x32_bf16 v[{vS+4*t}:{vS+4*t+3}], v[{r}:{r+3}], v[{vQ+4*j}:{vQ+4*j+3}], {c}")
        A("  s_nop 3")
        A(f"  v_max3_f32 v{vX}, v{vS}, v{vS+1}, v{vM}")
        A(f"  v_max3_f32 v{vX}, v{vS+2}, v{vS+3}, v{vX}")
        A("  s_nop 1")
        A(f"  v_max3_f32 v{vX}, v{vS+4}, v{vS+5}, v{vX}")
        A(f"  v_max3_f32 v{vX}, v{vS+6}, v{vS+7}, v{vX}")
        A(f"  v_mov_b32 v{vT}, v{vX}")
        A("  s_nop 1")
        A(f"  v_permlane32_swap_b32 v{vT}, v{vX}")
        A(f"  v_max_f32 v{vX}, v{vT}, v{vX}")
        A(f"  v_mov_b32 v{vT}, v{vX}")
        A("  s_nop 1")
        A(f"  v_permlane16_swap_b32 v{vT}, v{vX}")
        A(f"  v_max_f32 v{vM}, v{vT}, v{vX}")
        A(f"  v_mul_f32 v{vT}, s25, v{vM}")
        A(f"  v_sub_f32 v{vA}, v{vMC}, v{vT}")
        A(f"  v_mov_b32 v{vMC}, v{vT}")
        A(f"  v_exp_f32 v{vA}, v{vA}")
        for r in range(8):
            A(f"  v_fma_f32 v{vS+r}, v{vS+r}, s25, -v{vT}")
        for r in range(8):
            A(f"  v_exp_f32 v{vS+r}, v{vS+r}")
        A(f"  v_mul_f32 v{vL}, v{vL}, v{vA}")
        for r in range(32):
            A(f"  v_mul_f32 v{vO+r}, v{vO+r}, v{vA}")
        for r in range(4):
            A(f"  v_cvt_pk_bf16_f32 v{vP+r}, v{vS+2*r}, v{vS+2*r+1}")
        A(f"  v_add_f32 v{vS}, v{vS}, v{vS+1}")
        A(f"  v_add_f32 v{vS+2}, v{vS+2}, v{vS+3}")
        A(f"  v_add_f32 v{vS+4}, v{vS+4}, v{vS+5}")
        A(f"  v_add_f32 v{vS+6}, v{vS+6}, v{vS+7}")
        A(f"  v_add_f32 v{vS}, v{vS}, v{vS+2}")
        A(f"  v_add_f32 v{vS+4}, v{vS+4}, v{vS+6}")
        A(f"  v_add_f32 v{vL}, v{vL}, v{vS}")
        A(f"  v_add_f32 v{vL}, v{vL}, v{vS+4}")

    def vhalf(slot):
        A("  s_barrier")
        for db in range(8):
            for t in range(2):
                r = vV + 4*db + 2*t
                A(f"  ds_read_b64_tr_b16 v[{r}:{r+1}], v{aV+db} offset:{slot*SLOT + t*4096}")
        for db in range(8):
            A(f"  s_waitcnt lgkmcnt({14 - 2*db})")
            A(f"  v_mfma_f32_16x16x32_bf16 v[{vO+4*db}:{vO+4*db+3}], v[{vV+4*db}:{vV+4*db+3}], v[{vP}:{vP+3}], v[{vO+4*db}:{vO+4*db+3}]")

    A("L_cons_loop:")
    khalf(0); vhalf(1); khalf(2); vhalf(3)
    A("  s_sub_u32 s26, s26, 1")
    A("  s_cmp_lg_u32 s26, 0")
    A("  s_cbranch_scc1 L_cons_loop")

    A(f"  v_mov_b32 v{vT}, v{vL}")
    A("  s_nop 1")
    A(f"  v_permlane32_swap_b32 v{vT}, v{vL}")
    A(f"  v_add_f32 v{vL}, v{vT}, v{vL}")
    A(f"  v_mov_b32 v{vT}, v{vL}")
    A("  s_nop 1")
    A(f"  v_permlane16_swap_b32 v{vT}, v{vL}")
    A(f"  v_add_f32 v{vL}, v{vT}, v{vL}")
    A("  s_lshl_b32 s27, s3, 9")
    A("  v_lshl_add_u32 v4, v0, 3, s27")
    A("  v_xor_b32 v5, 512, v4")
    A(f"  v_mov_b32 v6, v{vMC}")
    A(f"  v_mov_b32 v7, v{vL}")
    A("  ds_write_b64 v4, v[6:7]")
    A("  s_waitcnt lgkmcnt(0)")
    A("  s_barrier")
    A("  ds_read_b64 v[6:7], v5")
    A("  s_waitcnt lgkmcnt(0)")
    A(f"  v_max_f32 v8, v6, v{vMC}")
    A(f"  v_sub_f32 v9, v{vMC}, v8")
    A("  v_sub_f32 v10, v6, v8")
    A("  v_exp_f32 v9, v9")
    A("  v_exp_f32 v10, v10")
    A("  s_nop 0")
    A(f"  v_mul_f32 v11, v9, v{vL}")
    A("  v_fma_f32 v11, v10, v7, v11")
    A("  v_rcp_f32 v11, v11")
    A("  s_nop 0")
    A("  v_mul_f32 v9, v9, v11")
    for r in range(32):
        A(f"  v_mul_f32 v{vO+r}, v{vO+r}, v9")
    A("  s_lshl_b32 s27, s3, 12")
    A("  v_lshl_add_u32 v4, v0, 4, s27")
    A("  v_xor_b32 v5, 4096, v4")
    A("  s_cmp_eq_u32 s3, 0")
    A("  s_cbranch_scc1 L_send_hi")
    for u in range(4):
        A(f"  ds_write_b128 v4, v[{vO+4*u}:{vO+4*u+3}] offset:{4096 + 1024*u}")
    for r in range(16):
        A(f"  v_mov_b32 v{vO+r}, v{vO+16+r}")
    A("  s_branch L_sent")
    A("L_send_hi:")
    for u in range(4):
        A(f"  ds_write_b128 v4, v[{vO+16+4*u}:{vO+16+4*u+3}] offset:{4096 + 1024*u}")
    A("L_sent:")
    A("  s_waitcnt lgkmcnt(0)")
    A("  s_barrier")
    for u in range(4):
        A(f"  ds_read_b128 v[{vK+4*u}:{vK+4*u+3}], v5 offset:{4096 + 1024*u}")
    A("  v_and_b32 v6, 7, v3")
    A("  v_lshlrev_b32 v6, 8, v6")
    A("  v_lshl_add_u32 v6, v2, 3, v6")
    A("  v_lshrrev_b32 v7, 3, v3")
    A("  v_lshl_add_u32 v6, v7, 6, v6")
    A("  s_lshl_b32 s27, s3, 7")
    A("  v_cmp_lt_u32 vcc, 7, v3")
    for u in range(4):
        A(f"  s_waitcnt lgkmcnt({3-u})")
        for r in range(4):
            A(f"  v_add_f32 v{vO+4*u+r}, v{vO+4*u+r}, v{vK+4*u+r}")
    for r in range(8):
        A(f"  v_cndmask_b32 v{vO+r}, v{vO+r}, v{vO+8+r}, vcc")
    for r in range(4):
        A(f"  v_cvt_pk_bf16_f32 v{vP+r}, v{vO+2*r}, v{vO+2*r+1}")
    A(f"  buffer_store_dwordx2 v[{vP}:{vP+1}], v6, s[12:15], s27 offen")
    A(f"  buffer_store_dwordx2 v[{vP+2}:{vP+3}], v6, s[12:15], s27 offen offset:32")
    if stamps:
        A("  s_add_u32 s3, s3, 1")
        A("  s_waitcnt vmcnt(0)")
        A("L_stamp:")
        A("  s_memrealtime s[42:43]")
        A("  s_getreg_b32 s46, hwreg(HW_REG_XCC_ID)")
        A("  s_getreg_b32 s47, hwreg(HW_REG_HW_ID)")
        A("  s_mul_i32 s30, s2, 3\n  s_add_u32 s30, s30, s3\n  s_lshl_b32 s30, s30, 4")
        A("  s_waitcnt lgkmcnt(0)")
        A("  v_mov_b32 v4, s40\n  v_mov_b32 v5, s42\n  v_mov_b32 v6, s46\n  v_mov_b32 v7, s47\n  v_mov_b32 v1, s30")
        A("  s_mov_b64 exec, 1")
        A("  global_store_dwordx4 v1, v[4:7], s[44:45]")
    A("L_end:")
    A("  s_endpgm")
    A('.section .rodata,"a"\n.p2align 6')
    A(f".amdhsa_kernel {KN}")
    A("  .amdhsa_next_free_vgpr 160\n  .amdhsa_next_free_sgpr 48\n  .amdhsa_accum_offset 160")
    A("  .amdhsa_group_segment_fixed_size 0\n  .amdhsa_kernarg_size 48\n  .amdhsa_user_sgpr_count 2")
    A("  .amdhsa_user_sgpr_kernarg_segment_ptr 1\n  .amdhsa_system_sgpr_workgroup_id_x 1\n.end_amdhsa_kernel")
    return "\n".join(L) + "\n"

if __name__ == "__main__":
    out = sys.argv[1]
    kw = {}
    for kv in sys.argv[2:]:
        a, b = kv.split("=")
        kw[a] = b.replace("+", " ") if a in ("pol",) else int(b)
    open(out, "w").write(gen(**kw))
```

```python
import sys, struct

KN = "standalone__gqa_softmax__sampling_kernel"
HEADER = """; Kernarg layout for this problem (48 bytes, ptrs only, base s[0:1]):
"""

def f2u(x):
    return struct.unpack("<I", struct.pack("<f", x))[0]

def gen(W=20, pol="nt", stamps=0, lds=65536, prio=0):
    L = []
    A = L.append
    R = 4
    SLOT = 16384
    NSLOT = 128
    NI = NSLOT * 16
    assert (15 + W) // 16 <= R - 2
    C = (128 ** -0.5) * 1.4426950408889634
    A(HEADER.rstrip())
    if stamps:
        A("; stamps=768")
    if stamps == 2:
        A("; prof=34")
    A(f"; @launch grid=(256,1,1) block=(192,1,1) lds={lds}")
    A('.amdgcn_target "amdgcn-amd-amdhsa--gfx950"')
    A(".text")
    A(f".globl {KN}\n.p2align 8\n.type {KN},@function\n{KN}:")
    A("  s_cmp_ge_u32 s2, 256")
    A("  s_cbranch_scc1 L_end")
    if stamps:
        A("  s_memrealtime s[40:41]")
        A("  s_load_dwordx2 s[44:45], s[0:1], 40")
    A("  s_load_dwordx4 s[4:7], s[0:1], 8          ; K, V")
    A("  s_load_dwordx2 s[16:17], s[0:1], 0        ; Q")
    A("  s_load_dwordx2 s[18:19], s[0:1], 24       ; out")
    A("  v_lshrrev_b32 v1, 6, v0")
    A("  v_and_b32 v0, 63, v0                      ; lane")
    A("  v_lshrrev_b32 v2, 4, v0                   ; g = lane >> 4")
    A("  v_readfirstlane_b32 s3, v1")
    A("  v_and_b32 v3, 15, v0                      ; i = lane & 15")
    A("  s_cmp_lg_u32 s3, 0")
    A("  s_cbranch_scc1 L_consumer")

    if prio:
        A(f"  s_setprio {prio}")
    for n in range(4):
        A(f"  v_add_u32 v4, {4*n}, v2")
        A("  v_xor_b32 v4, v4, v3")
        A("  v_lshlrev_b32 v4, 4, v4")
        A(f"  v_lshl_add_u32 v{8+n}, v2, 8, v4")
    for n in range(2):
        A(f"  v_add_u32 v4, {4*n}, v2")
        A("  v_lshlrev_b32 v4, 1, v4")
        A("  v_xor_b32 v4, v4, v3")
        A("  v_lshlrev_b32 v4, 4, v4")
        A(f"  v_lshl_add_u32 v{12+n}, v2, 8, v4")
    A("  s_lshr_b32 s21, s2, 12")
    A("  s_lshl_b32 s20, s2, 20")
    A("  s_mov_b32 s10, 0x100000")
    A("  s_mov_b32 s11, 0x20000")
    A("  s_mov_b32 s14, 0x100000")
    A("  s_mov_b32 s15, 0x20000")
    A("  s_mov_b32 s22, 0")
    A("  s_waitcnt lgkmcnt(0)")
    A("  s_add_u32 s8, s4, s20")
    A("  s_addc_u32 s9, s5, s21")
    A("  s_add_u32 s12, s6, s20")
    A("  s_addc_u32 s13, s7, s21")

    def body(first):
        for x in range(64):
            slot, i = x // 16, x % 16
            isv = slot & 1
            srd = "s[12:15]" if isv else "s[8:11]"
            vo = f"v{12 + (i & 1)}" if isv else f"v{8 + (i & 3)}"
            if i % 4 == 0:
                A(f"  s_mov_b32 m0, {slot*SLOT + (i//4)*4096}")
                A(f"  s_add_u32 s23, s22, {(slot//2)*SLOT + (i//4)*4096}")
            if not (first and x < W):
                A(f"  s_waitcnt vmcnt({W-1})")
            A(f"  buffer_load_dwordx4 {vo}, {srd}, s23 offen offset:{(i%4)*1024} {pol} lds")
            if (x - 15 - W) % 16 == 0 and not (first and x < 15 + W):
                A("  s_barrier")
        A(f"  s_add_u32 s22, s22, {2*SLOT}")
    def prof():
        if stamps == 2:
            A("  s_memrealtime s[50:51]")
            A("  s_waitcnt lgkmcnt(0)")
            A("  v_cmp_eq_u32 vcc, s52, v0")
            A("  v_mov_b32 v21, s50")
            A("  s_add_u32 s52, s52, 1")
            A("  v_cndmask_b32 v20, v20, v21, vcc")
    if stamps == 2:
        A("  s_mov_b32 s52, 1")
        A("  v_mov_b32 v20, s40")
    prof()
    body(True)
    A("L_load_loop:")
    prof()
    body(False)
    A(f"  s_cmp_lg_u32 s22, {NSLOT//2*SLOT}")
    A("  s_cbranch_scc1 L_load_loop")
    n0 = (NI - 1 - 15 - W) // 16 + 1
    for n in range(n0, NSLOT):
        A(f"  s_waitcnt vmcnt({NI - 1 - (16*n + 15)})")
        A("  s_barrier")
    if stamps == 2:
        prof()
        A("  s_lshl_b32 s53, s2, 8")
        A("  s_add_u32 s53, s53, 0x10000")
        A("  v_lshl_add_u32 v21, v0, 2, s53")
        A("  global_store_dword v21, v20, s[44:45]")
    if stamps:
        A("  s_branch L_stamp")
    else:
        A("  s_endpgm")

    vQ, vK, vV, vO, vS, vP = 16, 32, 64, 96, 128, 136
    aK, aV = 140, 144
    vM, vL, vA, vT, vX, vMC = 152, 153, 154, 155, 156, 157
    A("L_consumer:")
    A("  s_sub_u32 s3, s3, 1")
    A("  s_lshl_b32 s24, s3, 13")
    A("  v_and_b32 v4, 7, v3")
    A("  v_lshlrev_b32 v4, 8, v4")
    A("  v_lshl_add_u32 v4, v2, 4, v4")
    A("  s_lshl_b32 s20, s2, 11")
    A("  s_mov_b32 s10, 2048")
    A("  s_mov_b32 s11, 0x20000")
    A("  s_mov_b32 s14, 2048")
    A("  s_mov_b32 s15, 0x20000")
    A("  s_waitcnt lgkmcnt(0)")
    A("  s_add_u32 s8, s16, s20")
    A("  s_addc_u32 s9, s17, 0")
    A("  s_add_u32 s12, s18, s20")
    A("  s_addc_u32 s13, s19, 0")
    for j in range(4):
        A(f"  buffer_load_dwordx4 v[{vQ+4*j}:{vQ+4*j+3}], v4, s[8:11], 0 offen offset:{64*j}")
    A("  v_lshl_add_u32 v5, v3, 8, s24")
    for j in range(4):
        A(f"  v_add_u32 v6, {4*j}, v2")
        A("  v_xor_b32 v6, v6, v3")
        A(f"  v_lshl_add_u32 v{aK+j}, v6, 4, v5")
    A("  v_lshrrev_b32 v5, 2, v0")
    A("  v_and_b32 v6, 7, v5")
    A("  v_lshlrev_b32 v6, 1, v6")
    A("  v_bfe_u32 v7, v0, 1, 1")
    A("  v_xor_b32 v6, v6, v7")
    A("  v_and_b32 v7, 1, v0")
    A("  v_lshlrev_b32 v7, 3, v7")
    A("  v_lshl_add_u32 v5, v5, 8, v7")
    A("  v_add_u32 v5, s24, v5")
    for db in range(8):
        A(f"  v_xor_b32 v7, {2*db}, v6")
        A(f"  v_lshl_add_u32 v{aV+db}, v7, 4, v5")
    for r in range(32):
        A(f"  v_mov_b32 v{vO+r}, 0")
    A(f"  v_mov_b32 v{vM}, 0xff800000")
    A(f"  v_mov_b32 v{vMC}, 0xff800000")
    A(f"  v_mov_b32 v{vL}, 0")
    A(f"  s_mov_b32 s25, {hex(f2u(C))}")
    A("  s_mov_b32 s26, 32")
    A("  s_waitcnt vmcnt(0)")

    def khalf(slot):
        A("  s_barrier")
        for t in range(2):
            for j in range(4):
                r = vK + 16*t + 4*j
                A(f"  ds_read_b128 v[{r}:{r+3}], v{aK+j} offset:{slot*SLOT + t*4096}")
        for t in range(2):
            for j in range(4):
                r = vK + 16*t + 4*j
                A(f"  s_waitcnt lgkmcnt({7 - 4*t - j})")
                c = "0" if j == 0 else f"v[{vS+4*t}:{vS+4*t+3}]"
                A(f"  v_mfma_f32_16x16x32_bf16 v[{vS+4*t}:{vS+4*t+3}], v[{r}:{r+3}], v[{vQ+4*j}:{vQ+4*j+3}], {c}")
        A("  s_nop 3")
        A(f"  v_max3_f32 v{vX}, v{vS}, v{vS+1}, v{vM}")
        A(f"  v_max3_f32 v{vX}, v{vS+2}, v{vS+3}, v{vX}")
        A("  s_nop 1")
        A(f"  v_max3_f32 v{vX}, v{vS+4}, v{vS+5}, v{vX}")
        A(f"  v_max3_f32 v{vX}, v{vS+6}, v{vS+7}, v{vX}")
        A(f"  v_mov_b32 v{vT}, v{vX}")
        A("  s_nop 1")
        A(f"  v_permlane32_swap_b32 v{vT}, v{vX}")
        A(f"  v_max_f32 v{vX}, v{vT}, v{vX}")
        A(f"  v_mov_b32 v{vT}, v{vX}")
        A("  s_nop 1")
        A(f"  v_permlane16_swap_b32 v{vT}, v{vX}")
        A(f"  v_max_f32 v{vM}, v{vT}, v{vX}")
        A(f"  v_mul_f32 v{vT}, s25, v{vM}")
        A(f"  v_sub_f32 v{vA}, v{vMC}, v{vT}")
        A(f"  v_mov_b32 v{vMC}, v{vT}")
        A(f"  v_exp_f32 v{vA}, v{vA}")
        for r in range(8):
            A(f"  v_fma_f32 v{vS+r}, v{vS+r}, s25, -v{vT}")
        for r in range(8):
            A(f"  v_exp_f32 v{vS+r}, v{vS+r}")
        A(f"  v_mul_f32 v{vL}, v{vL}, v{vA}")
        for r in range(32):
            A(f"  v_mul_f32 v{vO+r}, v{vO+r}, v{vA}")
        for r in range(4):
            A(f"  v_cvt_pk_bf16_f32 v{vP+r}, v{vS+2*r}, v{vS+2*r+1}")
        A(f"  v_add_f32 v{vS}, v{vS}, v{vS+1}")
        A(f"  v_add_f32 v{vS+2}, v{vS+2}, v{vS+3}")
        A(f"  v_add_f32 v{vS+4}, v{vS+4}, v{vS+5}")
        A(f"  v_add_f32 v{vS+6}, v{vS+6}, v{vS+7}")
        A(f"  v_add_f32 v{vS}, v{vS}, v{vS+2}")
        A(f"  v_add_f32 v{vS+4}, v{vS+4}, v{vS+6}")
        A(f"  v_add_f32 v{vL}, v{vL}, v{vS}")
        A(f"  v_add_f32 v{vL}, v{vL}, v{vS+4}")

    def vhalf(slot):
        A("  s_barrier")
        for db in range(8):
            for t in range(2):
                r = vV + 4*db + 2*t
                A(f"  ds_read_b64_tr_b16 v[{r}:{r+1}], v{aV+db} offset:{slot*SLOT + t*4096}")
        for db in range(8):
            A(f"  s_waitcnt lgkmcnt({14 - 2*db})")
            A(f"  v_mfma_f32_16x16x32_bf16 v[{vO+4*db}:{vO+4*db+3}], v[{vV+4*db}:{vV+4*db+3}], v[{vP}:{vP+3}], v[{vO+4*db}:{vO+4*db+3}]")

    A("L_cons_loop:")
    khalf(0); vhalf(1); khalf(2); vhalf(3)
    A("  s_sub_u32 s26, s26, 1")
    A("  s_cmp_lg_u32 s26, 0")
    A("  s_cbranch_scc1 L_cons_loop")

    A(f"  v_mov_b32 v{vT}, v{vL}")
    A("  s_nop 1")
    A(f"  v_permlane32_swap_b32 v{vT}, v{vL}")
    A(f"  v_add_f32 v{vL}, v{vT}, v{vL}")
    A(f"  v_mov_b32 v{vT}, v{vL}")
    A("  s_nop 1")
    A(f"  v_permlane16_swap_b32 v{vT}, v{vL}")
    A(f"  v_add_f32 v{vL}, v{vT}, v{vL}")
    A("  s_lshl_b32 s27, s3, 9")
    A("  v_lshl_add_u32 v4, v0, 3, s27")
    A("  v_xor_b32 v5, 512, v4")
    A(f"  v_mov_b32 v6, v{vMC}")
    A(f"  v_mov_b32 v7, v{vL}")
    A("  ds_write_b64 v4, v[6:7]")
    A("  s_waitcnt lgkmcnt(0)")
    A("  s_barrier")
    A("  ds_read_b64 v[6:7], v5")
    A("  s_waitcnt lgkmcnt(0)")
    A(f"  v_max_f32 v8, v6, v{vMC}")
    A(f"  v_sub_f32 v9, v{vMC}, v8")
    A("  v_sub_f32 v10, v6, v8")
    A("  v_exp_f32 v9, v9")
    A("  v_exp_f32 v10, v10")
    A("  s_nop 0")
    A(f"  v_mul_f32 v11, v9, v{vL}")
    A("  v_fma_f32 v11, v10, v7, v11")
    A("  v_rcp_f32 v11, v11")
    A("  s_nop 0")
    A("  v_mul_f32 v9, v9, v11")
    for r in range(32):
        A(f"  v_mul_f32 v{vO+r}, v{vO+r}, v9")
    A("  s_lshl_b32 s27, s3, 12")
    A("  v_lshl_add_u32 v4, v0, 4, s27")
    A("  v_xor_b32 v5, 4096, v4")
    A("  s_cmp_eq_u32 s3, 0")
    A("  s_cbranch_scc1 L_send_hi")
    for u in range(4):
        A(f"  ds_write_b128 v4, v[{vO+4*u}:{vO+4*u+3}] offset:{4096 + 1024*u}")
    for r in range(16):
        A(f"  v_mov_b32 v{vO+r}, v{vO+16+r}")
    A("  s_branch L_sent")
    A("L_send_hi:")
    for u in range(4):
        A(f"  ds_write_b128 v4, v[{vO+16+4*u}:{vO+16+4*u+3}] offset:{4096 + 1024*u}")
    A("L_sent:")
    A("  s_waitcnt lgkmcnt(0)")
    A("  s_barrier")
    for u in range(4):
        A(f"  ds_read_b128 v[{vK+4*u}:{vK+4*u+3}], v5 offset:{4096 + 1024*u}")
    A("  v_and_b32 v6, 7, v3")
    A("  v_lshlrev_b32 v6, 8, v6")
    A("  v_lshl_add_u32 v6, v2, 3, v6")
    A("  v_lshrrev_b32 v7, 3, v3")
    A("  v_lshl_add_u32 v6, v7, 6, v6")
    A("  s_lshl_b32 s27, s3, 7")
    A("  v_cmp_lt_u32 vcc, 7, v3")
    for u in range(4):
        A(f"  s_waitcnt lgkmcnt({3-u})")
        for r in range(4):
            A(f"  v_add_f32 v{vO+4*u+r}, v{vO+4*u+r}, v{vK+4*u+r}")
    for r in range(8):
        A(f"  v_cndmask_b32 v{vO+r}, v{vO+r}, v{vO+8+r}, vcc")
    for r in range(4):
        A(f"  v_cvt_pk_bf16_f32 v{vP+r}, v{vO+2*r}, v{vO+2*r+1}")
    A(f"  buffer_store_dwordx2 v[{vP}:{vP+1}], v6, s[12:15], s27 offen")
    A(f"  buffer_store_dwordx2 v[{vP+2}:{vP+3}], v6, s[12:15], s27 offen offset:32")
    if stamps:
        A("  s_add_u32 s3, s3, 1")
        A("  s_waitcnt vmcnt(0)")
        A("L_stamp:")
        A("  s_memrealtime s[42:43]")
        A("  s_getreg_b32 s46, hwreg(HW_REG_XCC_ID)")
        A("  s_getreg_b32 s47, hwreg(HW_REG_HW_ID)")
        A("  s_mul_i32 s30, s2, 3\n  s_add_u32 s30, s30, s3\n  s_lshl_b32 s30, s30, 4")
        A("  s_waitcnt lgkmcnt(0)")
        A("  v_mov_b32 v4, s40\n  v_mov_b32 v5, s42\n  v_mov_b32 v6, s46\n  v_mov_b32 v7, s47\n  v_mov_b32 v1, s30")
        A("  s_mov_b64 exec, 1")
        A("  global_store_dwordx4 v1, v[4:7], s[44:45]")
    A("L_end:")
    A("  s_endpgm")
    A('.section .rodata,"a"\n.p2align 6')
    A(f".amdhsa_kernel {KN}")
    A("  .amdhsa_next_free_vgpr 160\n  .amdhsa_next_free_sgpr 56\n  .amdhsa_accum_offset 160")
    A("  .amdhsa_group_segment_fixed_size 0\n  .amdhsa_kernarg_size 48\n  .amdhsa_user_sgpr_count 2")
    A("  .amdhsa_user_sgpr_kernarg_segment_ptr 1\n  .amdhsa_system_sgpr_workgroup_id_x 1\n.end_amdhsa_kernel")
    return "\n".join(L) + "\n"

if __name__ == "__main__":
    out = sys.argv[1]
    kw = {}
    for kv in sys.argv[2:]:
        a, b = kv.split("=")
        kw[a] = b.replace("+", " ") if a in ("pol",) else int(b)
    open(out, "w").write(gen(**kw))
```

```python
import sys, struct

KN = "standalone__gqa_softmax__sampling_kernel"
HEADER = """; Kernarg layout for this problem (48 bytes, ptrs only, base s[0:1]):
"""

def f2u(x):
    return struct.unpack("<I", struct.pack("<f", x))[0]

def gen(W=20, pol="nt", stamps=0, prio=3, perm=0, xm="", tb="", R=3):
    L = []
    A = L.append
    SLOT = 32768
    STAT = R * SLOT
    lds = STAT + 2048
    assert W <= 32
    C = (128 ** -0.5) * 1.4426950408889634
    tbits = [int(x) for x in tb.split(".")] if tb else []
    tbits += [b for b in range(12, 20) if b not in tbits]
    A(HEADER.rstrip())
    if stamps:
        A("; stamps=1280")
    if stamps == 2:
        A("; prof=34")
    A(f"; @launch grid=(256,1,1) block=(320,1,1) lds={lds}")
    A('.amdgcn_target "amdgcn-amd-amdhsa--gfx950"')
    A(".text")
    A(f".globl {KN}\n.p2align 8\n.type {KN},@function\n{KN}:")
    A("  s_cmp_ge_u32 s2, 256")
    A("  s_cbranch_scc1 L_end")
    if stamps:
        A("  s_memrealtime s[40:41]")
        A("  s_load_dwordx2 s[44:45], s[0:1], 40")
        A("  s_mov_b32 s54, s2")
    A("  s_load_dwordx4 s[4:7], s[0:1], 8          ; K, V")
    A("  s_load_dwordx2 s[16:17], s[0:1], 0        ; Q")
    A("  s_load_dwordx2 s[18:19], s[0:1], 24       ; out")
    if perm == 1:
        A("  s_and_b32 s20, s2, 7\n  s_lshl_b32 s20, s20, 5\n  s_lshr_b32 s2, s2, 3\n  s_or_b32 s2, s2, s20")
    elif perm == 5:
        A("  s_mul_i32 s2, s2, 37\n  s_and_b32 s2, s2, 255\n  s_lshr_b32 s20, s2, 4\n  s_xor_b32 s2, s2, s20")
    A("  v_lshrrev_b32 v1, 6, v0")
    A("  v_and_b32 v0, 63, v0                      ; lane")
    A("  v_lshrrev_b32 v2, 4, v0                   ; g = lane >> 4")
    A("  v_readfirstlane_b32 s3, v1")
    A("  v_and_b32 v3, 15, v0                      ; i = lane & 15")
    A("  s_cmp_lg_u32 s3, 0")
    A("  s_cbranch_scc1 L_consumer")

    if prio:
        A(f"  s_setprio {prio}")
    for n in range(4):
        A(f"  v_add_u32 v4, {4*n}, v2")
        A("  v_xor_b32 v4, v4, v3")
        A("  v_lshlrev_b32 v4, 4, v4")
        A(f"  v_lshl_add_u32 v{8+n}, v2, 8, v4")
    A("  s_lshr_b32 s21, s2, 12")
    A("  s_lshl_b32 s20, s2, 20")
    A("  s_mov_b32 s10, 0x100000")
    A("  s_mov_b32 s11, 0x20000")
    A("  s_mov_b32 s29, 0")
    if xm:
        for term in xm.split("."):
            i, b = term.split("x")
            A(f"  s_bfe_u32 s22, s2, {(1 << 16) | int(i)}\n  s_lshl_b32 s22, s22, {int(b)}\n  s_xor_b32 s29, s29, s22")
    A("  s_mov_b32 s24, 0")
    A("  s_mov_b32 s28, 0")
    A("  s_waitcnt lgkmcnt(0)")
    A("  s_add_u32 s8, s4, s20")
    A("  s_addc_u32 s9, s5, s21")
    def prof():
        if stamps == 2:
            A("  s_memrealtime s[50:51]")
            A("  s_waitcnt lgkmcnt(0)")
            A("  v_cmp_eq_u32 vcc, s52, v0")
            A("  v_mov_b32 v21, s50")
            A("  s_add_u32 s52, s52, 1")
            A("  v_cndmask_b32 v20, v20, v21, vcc")
    if stamps == 2:
        A("  s_mov_b32 s52, 1")
        A("  v_mov_b32 v20, s40")
    A("L_load_loop:")
    if stamps == 2:
        A("  s_bitcmp1_b32 s28, 0\n  s_cbranch_scc1 L_noprof")
        prof()
        A("L_noprof:")
    if tbits[3:] == [15, 16, 17, 18, 19]:
        A("  s_and_b32 s22, s28, 31\n  s_lshl_b32 s22, s22, 15\n  s_xor_b32 s22, s22, s29")
    else:
        A("  s_mov_b32 s22, s29")
        for n, b in enumerate(tbits[3:]):
            A(f"  s_bfe_u32 s23, s28, {(1 << 16) | n}\n  s_lshl_b32 s23, s23, {b}\n  s_xor_b32 s22, s22, s23")
    for i in range(32):
        if i % 4 == 0:
            j = i // 4
            c = sum(((j >> n) & 1) << tbits[n] for n in range(3))
            A(f"  s_add_u32 m0, s24, {j*4096}")
            A(f"  s_xor_b32 s23, s22, {c}")
        A(f"  s_waitcnt vmcnt({W-1})")
        A(f"  buffer_load_dwordx4 v{8 + (i & 3)}, s[8:11], s23 offen offset:{(i%4)*1024} {pol} lds")
        if i == W - 1:
            A("  s_cmp_eq_u32 s28, 0")
            A("  s_cbranch_scc1 L_load_nobar")
            A("  s_barrier")
            A("L_load_nobar:")
    A(f"  s_add_u32 s24, s24, {SLOT}")
    A(f"  s_cmp_eq_u32 s24, {R*SLOT}")
    A("  s_cselect_b32 s24, 0, s24")
    A("  s_add_u32 s28, s28, 1")
    A("  s_cmp_lg_u32 s28, 32")
    A("  s_cbranch_scc1 L_load_next")
    for n in range(2):
        A(f"  v_add_u32 v4, {4*n}, v2")
        A("  v_lshlrev_b32 v4, 1, v4")
        A("  v_xor_b32 v4, v4, v3")
        A("  v_lshlrev_b32 v4, 4, v4")
        A(f"  v_lshl_add_u32 v{8+n}, v2, 8, v4")
        A(f"  v_mov_b32 v{10+n}, v{8+n}")
    A("  s_add_u32 s8, s6, s20")
    A("  s_addc_u32 s9, s7, s21")
    A("L_load_next:")
    A("  s_cmp_lg_u32 s28, 64")
    A("  s_cbranch_scc1 L_load_loop")
    A("  s_waitcnt vmcnt(0)")
    A("  s_barrier")
    if stamps == 2:
        prof()
        A("  s_lshl_b32 s53, s54, 8")
        A("  s_add_u32 s53, s53, 0x10000")
        A("  v_lshl_add_u32 v21, v0, 2, s53")
        A("  global_store_dword v21, v20, s[44:45]")
    if stamps:
        A("  s_branch L_stamp")
    else:
        A("  s_endpgm")

    vQ = vO = 16
    vF, vAcc, vB, vX = 48, 80, 84, 88
    vM, vL, vMC, vT = 92, 93, 94, 95
    aK, aV, vS = 96, 100, 120
    A("L_consumer:")
    A("  s_sub_u32 s3, s3, 1")
    A("  s_lshl_b32 s24, s3, 13")
    A("  v_and_b32 v4, 7, v3")
    A("  v_lshlrev_b32 v4, 8, v4")
    A("  v_lshl_add_u32 v4, v2, 4, v4")
    A("  v_and_b32 v5, 8, v3")
    A("  v_lshlrev_b32 v5, 9, v5")
    A("  v_add_u32 v6, v4, v5")
    A("  v_xor_b32 v7, 4096, v6")
    A("  s_lshl_b32 s20, s2, 11")
    A("  s_mov_b32 s10, 2048")
    A("  s_mov_b32 s11, 0x20000")
    A("  s_mov_b32 s14, 2048")
    A("  s_mov_b32 s15, 0x20000")
    A("  s_waitcnt lgkmcnt(0)")
    A("  s_add_u32 s8, s16, s20")
    A("  s_addc_u32 s9, s17, 0")
    A("  s_add_u32 s12, s18, s20")
    A("  s_addc_u32 s13, s19, 0")
    for h in range(2):
        for j in range(4):
            r = vQ + 16*h + 4*j
            A(f"  buffer_load_dwordx4 v[{r}:{r+3}], v{6+h}, s[8:11], 0 offen offset:{64*j}")
    A("  v_lshl_add_u32 v5, v3, 8, s24")
    for j in range(4):
        A(f"  v_add_u32 v6, {4*j}, v2")
        A("  v_xor_b32 v6, v6, v3")
        A(f"  v_lshl_add_u32 v{aK+j}, v6, 4, v5")
    A("  v_lshrrev_b32 v5, 2, v0")
    A("  v_and_b32 v6, 7, v5")
    A("  v_lshlrev_b32 v6, 1, v6")
    A("  v_bfe_u32 v7, v0, 1, 1")
    A("  v_xor_b32 v6, v6, v7")
    A("  v_and_b32 v7, 1, v0")
    A("  v_lshlrev_b32 v7, 3, v7")
    A("  v_lshl_add_u32 v5, v5, 8, v7")
    A(f"  s_add_u32 s27, s24, {(32 % R) * SLOT}")
    A("  v_add_u32 v5, s27, v5")
    for db in range(8):
        A(f"  v_xor_b32 v7, {2*db}, v6")
        A(f"  v_lshl_add_u32 v{aV+db}, v7, 4, v5")
    A(f"  v_mov_b32 v{vM}, 0xff800000")
    A(f"  v_mov_b32 v{vL}, 0")
    A(f"  s_mov_b32 s25, {hex(f2u(C))}")
    A("  s_mov_b32 s26, 0")
    A("  s_mov_b32 s30, 0")
    A(f"  s_mov_b32 s32, {SLOT}")
    A("  s_lshl_b32 s27, s3, 8")
    A(f"  s_add_u32 s27, s27, {STAT}")
    A("  v_lshl_add_u32 v8, v0, 2, s27")
    A(f"  v_lshlrev_b32 v9, 2, v0")
    A(f"  v_add_u32 v9, {STAT}, v9")
    A("  s_waitcnt vmcnt(0)")

    def ring_step():
        A(f"  s_add_u32 s30, s30, {SLOT}")
        A(f"  s_cmp_eq_u32 s30, {R*SLOT}")
        A("  s_cselect_b32 s30, 0, s30")
        A(f"  s_cselect_b32 s31, {hex((1 << 32) - (R-1)*SLOT)}, s32")

    A("L_k_loop:")
    ring_step()
    A("  s_barrier")
    for t in range(2):
        for j in range(4):
            r = vF + 16*t + 4*j
            A(f"  ds_read_b128 v[{r}:{r+3}], v{aK+j} offset:{t*4096}")
    for j in range(4):
        A(f"  v_add_u32 v{aK+j}, s31, v{aK+j}")
    for t in range(2):
        for j in range(4):
            r = vF + 16*t + 4*j
            A(f"  s_waitcnt lgkmcnt({7 - 4*t - j})")
            c = "0" if t == 0 and j == 0 else f"v[{vAcc}:{vAcc+3}]"
            A(f"  v_mfma_f32_16x16x32_bf16 v[{vAcc}:{vAcc+3}], v[{r}:{r+3}], v[{vQ+16*t+4*j}:{vQ+16*t+4*j+3}], {c}")
    A("  s_nop 7")
    A("  s_set_gpr_idx_on s26, gpr_idx(DST)")
    for r in range(4):
        A(f"  v_mov_b32 v{vS+r}, v{vAcc+r}")
    A("  s_set_gpr_idx_off")
    A(f"  v_max3_f32 v{vM}, v{vAcc}, v{vAcc+1}, v{vM}")
    A(f"  v_max3_f32 v{vM}, v{vAcc+2}, v{vAcc+3}, v{vM}")
    A("  s_add_u32 s26, s26, 4")
    A("  s_cmp_lg_u32 s26, 128")
    A("  s_cbranch_scc1 L_k_loop")

    def lane_reduce(op, v):
        A(f"  v_mov_b32 v{vT}, v{v}")
        A("  s_nop 1")
        A(f"  v_permlane32_swap_b32 v{vT}, v{v}")
        A(f"  {op} v{v}, v{vT}, v{v}")
        A(f"  v_mov_b32 v{vT}, v{v}")
        A("  s_nop 1")
        A(f"  v_permlane16_swap_b32 v{vT}, v{v}")
        A(f"  {op} v{v}, v{vT}, v{v}")
        A("  s_nop 1")
        A(f"  {op}_dpp v{v}, v{v}, v{v} row_ror:8 row_mask:0xf bank_mask:0xf")

    def make_p():
        A("  s_set_gpr_idx_on s26, gpr_idx(SRC0)")
        for r in range(4):
            A(f"  v_mov_b32 v{vX+r}, v{vS+r}")
        A("  s_set_gpr_idx_off")
        for r in range(4):
            A(f"  v_fma_f32 v{vX+r}, v{vX+r}, s25, -v{vMC}")
        for r in range(4):
            A(f"  v_exp_f32 v{vX+r}, v{vX+r}")
        A("  s_add_u32 s26, s26, 4")
        A(f"  v_cvt_pk_bf16_f32 v{vB}, v{vX}, v{vX+1}")
        A(f"  v_cvt_pk_bf16_f32 v{vB+1}, v{vX+2}, v{vX+3}")
        A(f"  v_add_f32 v{vX}, v{vX}, v{vX+1}")
        A(f"  v_add_f32 v{vX+2}, v{vX+2}, v{vX+3}")
        A(f"  v_mov_b32_dpp v{vB+2}, v{vB} row_ror:8 row_mask:0xf bank_mask:0xf")
        A(f"  v_mov_b32_dpp v{vB+3}, v{vB+1} row_ror:8 row_mask:0xf bank_mask:0xf")
        A(f"  v_add_f32 v{vL}, v{vL}, v{vX}")
        A(f"  v_add_f32 v{vL}, v{vL}, v{vX+2}")

    def v_reads():
        for db in range(8):
            for t in range(2):
                r = vF + 4*db + 2*t
                A(f"  ds_read_b64_tr_b16 v[{r}:{r+1}], v{aV+db} offset:{t*4096}")

    def pv(extra=0):
        for db in range(8):
            A(f"  s_waitcnt lgkmcnt({min(15, 14 - 2*db + extra)})")
            A(f"  v_mfma_f32_16x16x32_bf16 v[{vO+4*db}:{vO+4*db+3}], v[{vF+4*db}:{vF+4*db+3}], v[{vB}:{vB+3}], v[{vO+4*db}:{vO+4*db+3}]")

    lane_reduce("v_max_f32", vM)
    A(f"  ds_write_b32 v8, v{vM}")
    for r in range(32):
        A(f"  v_mov_b32 v{vO+r}, 0")
    A("  s_mov_b32 s26, 0")
    ring_step()
    A("  s_waitcnt lgkmcnt(0)")
    A("  s_barrier")
    A(f"  ds_read2st64_b32 v[{vX}:{vX+1}], v9 offset0:0 offset1:1")
    A(f"  ds_read2st64_b32 v[{vX+2}:{vX+3}], v9 offset0:2 offset1:3")
    A("  s_waitcnt lgkmcnt(0)")
    A(f"  v_max3_f32 v{vM}, v{vX}, v{vX+1}, v{vX+2}")
    A(f"  v_max_f32 v{vM}, v{vM}, v{vX+3}")
    A(f"  v_mul_f32 v{vMC}, s25, v{vM}")
    make_p()
    A("  s_branch L_v_entry")
    A("; ---- V phase")
    A("L_v_loop:")
    ring_step()
    A("  s_barrier")
    A("L_v_entry:")
    v_reads()
    for db in range(8):
        A(f"  v_add_u32 v{aV+db}, s31, v{aV+db}")
    pv()
    make_p()
    A("  s_cmp_lg_u32 s26, 128")
    A("  s_cbranch_scc1 L_v_loop")

    lane_reduce("v_add_f32", vL)
    A(f"  ds_write_b32 v8, v{vL} offset:1024")
    XCH = ((61 % R)) * SLOT
    A("  s_lshl_b32 s27, s3, 12")
    A(f"  s_add_u32 s27, s27, {XCH}")
    A("  v_lshl_add_u32 v10, v0, 4, s27")
    A("  s_lshl_b32 s27, s3, 10")
    A(f"  s_add_u32 s27, s27, {XCH}")
    A("  v_lshl_add_u32 v11, v0, 4, s27")
    A("  v_and_b32 v6, 7, v3")
    A("  v_lshlrev_b32 v6, 8, v6")
    A("  v_lshl_add_u32 v6, v2, 3, v6")
    A("  v_lshrrev_b32 v7, 3, v3")
    A("  v_lshl_add_u32 v6, v7, 5, v6")
    A("  s_lshl_b32 s27, s3, 6")
    A("  s_waitcnt lgkmcnt(0)")
    A("  s_barrier")
    v_reads()
    A(f"  ds_read2st64_b32 v[{vX}:{vX+1}], v9 offset0:4 offset1:5")
    A(f"  ds_read2st64_b32 v[{vX+2}:{vX+3}], v9 offset0:6 offset1:7")
    pv(2)
    A("  s_waitcnt lgkmcnt(0)")
    A(f"  v_add_f32 v{vX}, v{vX}, v{vX+1}")
    A(f"  v_add_f32 v{vX+2}, v{vX+2}, v{vX+3}")
    A(f"  v_add_f32 v{vX}, v{vX}, v{vX+2}")
    A(f"  v_rcp_f32 v{vL}, v{vX}")
    for u in range(4):
        if u == 3:
            A("  s_nop 1")
        for r in range(4):
            A(f"  v_mov_b32_dpp v{vO+8*u+r}, v{vO+8*u+4+r} row_ror:8 row_mask:0xf bank_mask:0xc")
        A(f"  ds_write_b128 v10, v[{vO+8*u}:{vO+8*u+3}] offset:{1024*u}")
    A("  s_waitcnt lgkmcnt(0)")
    A("  s_barrier")
    for w in range(4):
        A(f"  ds_read_b128 v[{vF+4*w}:{vF+4*w+3}], v11 offset:{4096*w}")
    A("  s_waitcnt lgkmcnt(2)")
    for r in range(4):
        A(f"  v_add_f32 v{vF+r}, v{vF+r}, v{vF+4+r}")
    A("  s_waitcnt lgkmcnt(0)")
    for r in range(4):
        A(f"  v_add_f32 v{vF+8+r}, v{vF+8+r}, v{vF+12+r}")
    for r in range(4):
        A(f"  v_add_f32 v{vF+r}, v{vF+r}, v{vF+8+r}")
    for r in range(4):
        A(f"  v_mul_f32 v{vF+r}, v{vF+r}, v{vL}")
    A(f"  v_cvt_pk_bf16_f32 v{vB}, v{vF}, v{vF+1}")
    A(f"  v_cvt_pk_bf16_f32 v{vB+1}, v{vF+2}, v{vF+3}")
    A(f"  buffer_store_dwordx2 v[{vB}:{vB+1}], v6, s[12:15], s27 offen")
    if stamps:
        A("  s_add_u32 s3, s3, 1")
        A("  s_waitcnt vmcnt(0)")
        A("L_stamp:")
        A("  s_memrealtime s[42:43]")
        A("  s_getreg_b32 s46, hwreg(HW_REG_XCC_ID)")
        A("  s_getreg_b32 s47, hwreg(HW_REG_HW_ID)")
        A("  s_mul_i32 s30, s54, 5\n  s_add_u32 s30, s30, s3\n  s_lshl_b32 s30, s30, 4")
        A("  s_waitcnt lgkmcnt(0)")
        A("  v_mov_b32 v4, s40\n  v_mov_b32 v5, s42\n  v_mov_b32 v6, s46\n  v_mov_b32 v7, s47\n  v_mov_b32 v1, s30")
        A("  s_mov_b64 exec, 1")
        A("  global_store_dwordx4 v1, v[4:7], s[44:45]")
    A("L_end:")
    A("  s_endpgm")
    A('.section .rodata,"a"\n.p2align 6')
    A(f".amdhsa_kernel {KN}")
    A("  .amdhsa_next_free_vgpr 248\n  .amdhsa_next_free_sgpr 56\n  .amdhsa_accum_offset 248")
    A("  .amdhsa_group_segment_fixed_size 0\n  .amdhsa_kernarg_size 48\n  .amdhsa_user_sgpr_count 2")
    A("  .amdhsa_user_sgpr_kernarg_segment_ptr 1\n  .amdhsa_system_sgpr_workgroup_id_x 1\n.end_amdhsa_kernel")
    return "\n".join(L) + "\n"

if __name__ == "__main__":
    out = sys.argv[1]
    kw = {}
    for kv in sys.argv[2:]:
        a, b = kv.split("=")
        kw[a] = b.replace("+", " ") if a in ("pol", "xm", "tb") else int(b)
    open(out, "w").write(gen(**kw))
```

```python
import sys, struct, re

KN = "standalone__gqa_softmax__sampling_kernel"
HEADER = """; Kernarg layout for this problem (48 bytes, ptrs only, base s[0:1]):
"""

def f2u(x):
    return struct.unpack("<I", struct.pack("<f", x))[0]

def gen(W="20", pol="nt", spol="", stamps=0, prio=0, perm=0, rev=0, pads=1, R=3, padgap=7):
    L = []
    A = L.append
    SLOT = 32768
    STAT = R * SLOT
    lds = STAT + 2048
    Ws = [int(x) for x in str(W).split(".")]
    Ws = (Ws * 4)[:4]
    Wmax = max(Ws)
    assert Wmax <= 32
    barg = (Wmax + 3) // 4 - 1
    C = (128 ** -0.5) * 1.4426950408889634
    A(HEADER.rstrip())
    if stamps:
        A("; stamps=1280")
    if stamps == 2:
        A("; prof=34")
    A(f"; @launch grid=(256,1,1) block=(320,1,1) lds={lds}")
    A('.amdgcn_target "amdgcn-amd-amdhsa--gfx950"')
    A(".text")
    A(f".globl {KN}\n.p2align 8\n.type {KN},@function\n{KN}:")
    A("  s_load_dwordx4 s[4:7], s[0:1], 8          ; K, V")
    if stamps:
        A("  s_memrealtime s[40:41]")
        A("  s_load_dwordx2 s[44:45], s[0:1], 40")
        A("  s_mov_b32 s54, s2")
    A("  v_lshrrev_b32 v1, 6, v0")
    A("  s_lshr_b32 s3, s2, 8")
    A("  s_cbranch_scc1 L_end")
    A("  v_readfirstlane_b32 s3, v1")
    A("  v_bfe_u32 v2, v0, 4, 2                    ; g = lane >> 4")
    A("  v_and_b32 v3, 15, v0                      ; i = lane & 15")
    if perm == 5:
        A("  s_mul_i32 s2, s2, 37\n  s_and_b32 s2, s2, 255\n  s_lshr_b32 s20, s2, 4\n  s_xor_b32 s2, s2, s20")
    A("  s_cmp_lg_u32 s3, 0")
    A("  s_cbranch_scc1 L_consumer")

    if prio:
        A(f"  s_setprio {prio}")
    A("  v_xor_b32 v4, v2, v3")
    A("  v_lshlrev_b32 v4, 4, v4")
    A("  v_lshl_add_u32 v8, v2, 8, v4")
    A("  v_xor_b32 v9, 64, v8")
    A("  s_movk_i32 s22, 0x80")
    A("  v_xor_b32 v10, s22, v8")
    A("  v_xor_b32 v11, s22, v9")
    A("  s_lshl_b32 s20, s2, 20")
    A("  s_lshl_b32 s10, 1, 20")
    A("  s_lshl_b32 s11, 1, 17")
    A("  s_mov_b32 m0, 0")
    A("  s_mov_b32 s23, 0")
    A("  s_mov_b32 s28, 0")
    A(f"  s_mov_b32 s30, {8 + barg}")
    A(f"  s_mov_b32 s31, {R*SLOT}")
    A("  s_movk_i32 s33, 0x100")
    if stamps == 2:
        A("  s_mov_b32 s52, 1")
    A("  s_waitcnt lgkmcnt(0)")
    if stamps == 2:
        A("  v_mov_b32 v20, s40")
    A("  s_add_u32 s8, s4, s20")
    A("  s_addc_u32 s9, s5, 0")
    def prof():
        A("  s_memrealtime s[50:51]")
        A("  s_waitcnt lgkmcnt(0)")
        A("  v_cmp_eq_u32 vcc, s52, v0")
        A("  v_mov_b32 v21, s50")
        A("  s_add_u32 s52, s52, 1")
        A("  v_cndmask_b32 v20, v20, v21, vcc")
    A("L_load_loop:")
    if stamps == 2:
        A("  s_and_b32 s53, s28, 15\n  s_cbranch_scc1 L_noprof")
        prof()
        A("L_noprof:")
    for i in range(4):
        A(f"  s_waitcnt vmcnt({Ws[i]-1})")
        A(f"  buffer_load_dwordx4 v{8+i}, s[8:11], s23 offen offset:{i*1024} {pol} lds")
    A("  s_cmp_lg_u32 s28, s30")
    A("  s_cbranch_scc1 L_load_nobar")
    A("  s_barrier")
    A("  s_add_u32 s30, s30, 8")
    A("L_load_nobar:")
    A("  s_addk_i32 m0, 0x1000")
    A("  s_add_u32 s28, s28, 1")
    A("  s_cmp_eq_u32 m0, s31")
    A("  s_cselect_b32 m0, 0, m0")
    if rev:
        A("  s_brev_b32 s23, s28")
        A("  s_lshr_b32 s23, s23, 29")
        A("  s_and_b32 s22, s28, 0xf8")
        A("  s_or_b32 s23, s23, s22")
        A("  s_lshl_b32 s23, s23, 12")
    else:
        A("  s_addk_i32 s23, 0x1000")
    A("  s_cmp_lg_u32 s28, s33")
    A("  s_cbranch_scc1 L_load_loop")
    A("@PADL")
    A("  s_bitcmp1_b32 s28, 9")
    A("  s_cbranch_scc1 L_load_done")
    A("  v_lshlrev_b32 v4, 1, v2")
    A("  v_xor_b32 v4, v4, v3")
    A("  v_lshlrev_b32 v4, 4, v4")
    A("  v_lshl_add_u32 v8, v2, 8, v4")
    A("  v_xor_b32 v9, 0x80, v8")
    A("  s_add_u32 s8, s6, s20")
    A("  s_addc_u32 s9, s7, 0")
    A("@PADL")
    A("  v_mov_b32 v10, v8")
    A("  v_mov_b32 v11, v9")
    A("  s_mov_b32 s23, 0")
    A("  s_movk_i32 s33, 0x200")
    A("  s_branch L_load_loop")
    A("L_load_done:")
    A("  s_waitcnt vmcnt(0)")
    A("  s_barrier")
    if stamps == 2:
        prof()
        A("  s_lshl_b32 s53, s54, 8")
        A("  s_add_u32 s53, s53, 0x10000")
        A("  v_lshl_add_u32 v21, v0, 2, s53")
        A("  global_store_dword v21, v20, s[44:45]")
    if stamps:
        A("  s_branch L_stamp")
    else:
        A("  s_endpgm")

    vQ = vO = 16
    vF, vAcc, vB, vX = 48, 80, 84, 88
    vM, vL, vMC, vT = 92, 93, 94, 95
    aK, aV, vS = 96, 100, 120
    A("L_consumer:")
    A("  s_load_dwordx2 s[16:17], s[0:1], 0        ; Q")
    A("  s_load_dwordx2 s[18:19], s[0:1], 24       ; out")
    A("  v_and_b32 v0, 63, v0                      ; lane")
    A("  v_lshlrev_b32 v4, 8, v3")
    A("  v_lshl_add_u32 v6, v2, 4, v4")
    A("  v_xor_b32 v7, 0x800, v6")
    A("  s_lshl_b32 s20, s2, 11")
    A("  s_movk_i32 s10, 0x800")
    A("  s_lshl_b32 s11, 1, 17")
    A("  s_sub_u32 s3, s3, 1")
    A("  s_waitcnt lgkmcnt(0)")
    A("  s_add_u32 s8, s16, s20")
    A("  s_addc_u32 s9, s17, 0")
    for h in range(2):
        for j in range(4):
            r = vQ + 16*h + 4*j
            A(f"  buffer_load_dwordx4 v[{r}:{r+3}], v{6+h}, s[8:11], 0 offen offset:{64*j}")
    A("  s_add_u32 s12, s18, s20")
    A("  s_addc_u32 s13, s19, 0")
    A("  s_movk_i32 s14, 0x800")
    A("  s_lshl_b32 s15, 1, 17")
    A("  s_lshl_b32 s24, s3, 13")
    A("  v_xor_b32 v5, v2, v3")
    A("  v_lshl_add_u32 v5, v5, 4, v4")
    A(f"  v_add_u32 v{aK}, s24, v5")
    A(f"  v_xor_b32 v{aK+1}, 64, v{aK}")
    A(f"  v_xor_b32 v{aK+2}, 0x80, v{aK}")
    A(f"  v_xor_b32 v{aK+3}, 0xc0, v{aK}")
    A(f"  v_mov_b32 v{vM}, 0xff800000")
    A("  s_mov_b32 s26, 0")
    A("  s_mov_b32 s30, 0")
    A(f"  s_mov_b32 s32, {SLOT}")
    A("@WARM0")
    A("  s_waitcnt vmcnt(0)")

    def ring_step():
        A("  s_add_u32 s30, s30, s32")
        A(f"  s_cmp_eq_u32 s30, {R*SLOT}")
        A("  s_cselect_b32 s30, 0, s30")
        A(f"  s_cselect_b32 s31, {hex((1 << 32) - (R-1)*SLOT)}, s32")

    A("L_k_loop:")
    A("@AUTO0")
    ring_step()
    A("  s_barrier")
    for t in range(2):
        for j in range(4):
            r = vF + 16*t + 4*j
            A(f"  ds_read_b128 v[{r}:{r+3}], v{aK+j} offset:{t*4096}")
    for j in range(4):
        A(f"  v_add_u32 v{aK+j}, s31, v{aK+j}")
    for t in range(2):
        for j in range(4):
            r = vF + 16*t + 4*j
            A(f"  s_waitcnt lgkmcnt({7 - 4*t - j})")
            c = "0" if t == 0 and j == 0 else f"v[{vAcc}:{vAcc+3}]"
            A(f"  v_mfma_f32_16x16x32_bf16 v[{vAcc}:{vAcc+3}], v[{r}:{r+3}], v[{vQ+16*t+4*j}:{vQ+16*t+4*j+3}], {c}")
    A("  s_nop 7")
    A("  s_set_gpr_idx_on s26, gpr_idx(DST)")
    for r in range(4):
        A(f"  v_mov_b32 v{vS+r}, v{vAcc+r}")
    A("  s_set_gpr_idx_off")
    A(f"  v_max3_f32 v{vM}, v{vAcc}, v{vAcc+1}, v{vM}")
    A(f"  v_max3_f32 v{vM}, v{vAcc+2}, v{vAcc+3}, v{vM}")
    A("  s_add_u32 s26, s26, 4")
    A("@ENDAUTO")
    A("@WARM1")
    A("  s_cmp_lg_u32 s26, 128")
    A("  s_cbranch_scc1 L_k_loop")

    def lane_reduce(op, v):
        A(f"  v_mov_b32 v{vT}, v{v}")
        A("  s_nop 1")
        A(f"  v_permlane32_swap_b32 v{vT}, v{v}")
        A(f"  {op} v{v}, v{vT}, v{v}")
        A(f"  v_mov_b32 v{vT}, v{v}")
        A("  s_nop 1")
        A(f"  v_permlane16_swap_b32 v{vT}, v{v}")
        A(f"  {op} v{v}, v{vT}, v{v}")
        A("  s_nop 1")
        A(f"  {op}_dpp v{v}, v{v}, v{v} row_ror:8 row_mask:0xf bank_mask:0xf")

    def make_p():
        A("  s_set_gpr_idx_on s26, gpr_idx(SRC0)")
        for r in range(4):
            A(f"  v_mov_b32 v{vX+r}, v{vS+r}")
        A("  s_set_gpr_idx_off")
        for r in range(4):
            A(f"  v_fma_f32 v{vX+r}, v{vX+r}, s25, -v{vMC}")
        for r in range(4):
            A(f"  v_exp_f32 v{vX+r}, v{vX+r}")
        A("  s_add_u32 s26, s26, 4")
        A(f"  v_cvt_pk_bf16_f32 v{vB}, v{vX}, v{vX+1}")
        A(f"  v_cvt_pk_bf16_f32 v{vB+1}, v{vX+2}, v{vX+3}")
        A(f"  v_add_f32 v{vX}, v{vX}, v{vX+1}")
        A(f"  v_add_f32 v{vX+2}, v{vX+2}, v{vX+3}")
        A(f"  v_mov_b32_dpp v{vB+2}, v{vB} row_ror:8 row_mask:0xf bank_mask:0xf")
        A(f"  v_mov_b32_dpp v{vB+3}, v{vB+1} row_ror:8 row_mask:0xf bank_mask:0xf")
        A(f"  v_add_f32 v{vL}, v{vL}, v{vX}")
        A(f"  v_add_f32 v{vL}, v{vL}, v{vX+2}")

    def v_reads():
        for db in range(8):
            for t in range(2):
                r = vF + 4*db + 2*t
                A(f"  ds_read_b64_tr_b16 v[{r}:{r+1}], v{aV+db} offset:{t*4096}")

    def pv(extra=0):
        for db in range(8):
            A(f"  s_waitcnt lgkmcnt({min(15, 14 - 2*db + extra)})")
            A(f"  v_mfma_f32_16x16x32_bf16 v[{vO+4*db}:{vO+4*db+3}], v[{vF+4*db}:{vF+4*db+3}], v[{vB}:{vB+3}], v[{vO+4*db}:{vO+4*db+3}]")

    A("@AUTO1")
    lane_reduce("v_max_f32", vM)
    A("  s_lshl_b32 s27, s3, 8")
    A(f"  s_add_u32 s27, s27, {STAT}")
    A("  v_lshl_add_u32 v8, v0, 2, s27")
    A(f"  ds_write_b32 v8, v{vM}")
    A(f"  v_lshlrev_b32 v9, 2, v0")
    A(f"  v_add_u32 v9, {STAT}, v9")
    A("  v_lshrrev_b32 v5, 2, v0")
    A("  v_and_b32 v6, 7, v5")
    A("  v_lshlrev_b32 v6, 1, v6")
    A("  v_bfe_u32 v7, v0, 1, 1")
    A("  v_xor_b32 v6, v6, v7")
    A("  v_and_b32 v7, 1, v0")
    A("  v_lshlrev_b32 v7, 3, v7")
    A("  v_lshl_add_u32 v5, v5, 8, v7")
    A("  s_add_u32 s27, s24, s30")
    A("  v_add_u32 v5, s27, v5")
    A(f"  v_lshl_add_u32 v{aV}, v6, 4, v5")
    for db in range(1, 8):
        A(f"  v_xor_b32 v{aV+db}, {32*db}, v{aV}")
    for r in range(0, 32, 2):
        A(f"  v_mov_b64 v[{vO+r}:{vO+r+1}], 0")
    A(f"  v_mov_b32 v{vL}, 0")
    A(f"  s_mov_b32 s25, {hex(f2u(C))}")
    A("  s_mov_b32 s26, 0")
    ring_step()
    A("  s_waitcnt lgkmcnt(0)")
    A("  s_barrier")
    A(f"  ds_read2st64_b32 v[{vX}:{vX+1}], v9 offset0:0 offset1:1")
    A(f"  ds_read2st64_b32 v[{vX+2}:{vX+3}], v9 offset0:2 offset1:3")
    A("  s_waitcnt lgkmcnt(0)")
    A(f"  v_max3_f32 v{vM}, v{vX}, v{vX+1}, v{vX+2}")
    A(f"  v_max_f32 v{vM}, v{vM}, v{vX+3}")
    A(f"  v_mul_f32 v{vMC}, s25, v{vM}")
    make_p()
    A("  s_branch L_v_entry")
    A("; ---- V phase")
    A("L_v_loop:")
    ring_step()
    A("  s_barrier")
    A("L_v_entry:")
    v_reads()
    for db in range(8):
        A(f"  v_add_u32 v{aV+db}, s31, v{aV+db}")
    pv()
    make_p()
    A("  s_cmp_lg_u32 s26, 128")
    A("  s_cbranch_scc1 L_v_loop")

    lane_reduce("v_add_f32", vL)
    A(f"  ds_write_b32 v8, v{vL} offset:1024")
    XCH = ((61 % R)) * SLOT
    A("  s_lshl_b32 s27, s3, 12")
    A(f"  s_add_u32 s27, s27, {XCH}")
    A("  v_lshl_add_u32 v10, v0, 4, s27")
    A("  s_lshl_b32 s27, s3, 10")
    A(f"  s_add_u32 s27, s27, {XCH}")
    A("  v_lshl_add_u32 v11, v0, 4, s27")
    A("  v_and_b32 v6, 7, v3")
    A("  v_lshlrev_b32 v6, 8, v6")
    A("  v_lshl_add_u32 v6, v2, 3, v6")
    A("  v_lshrrev_b32 v7, 3, v3")
    A("  v_lshl_add_u32 v6, v7, 5, v6")
    A("  s_lshl_b32 s27, s3, 6")
    A("  s_waitcnt lgkmcnt(0)")
    A("  s_barrier")
    v_reads()
    A(f"  ds_read2st64_b32 v[{vX}:{vX+1}], v9 offset0:4 offset1:5")
    A(f"  ds_read2st64_b32 v[{vX+2}:{vX+3}], v9 offset0:6 offset1:7")
    pv(2)
    A("  s_waitcnt lgkmcnt(0)")
    A(f"  v_add_f32 v{vX}, v{vX}, v{vX+1}")
    A(f"  v_add_f32 v{vX+2}, v{vX+2}, v{vX+3}")
    A(f"  v_add_f32 v{vX}, v{vX}, v{vX+2}")
    A(f"  v_rcp_f32 v{vL}, v{vX}")
    for u in range(4):
        for r in range(4):
            A(f"  v_mov_b32_dpp v{vO+8*u+r}, v{vO+8*u+4+r} row_ror:8 row_mask:0xf bank_mask:0xc")
        A(f"  ds_write_b128 v10, v[{vO+8*u}:{vO+8*u+3}] offset:{1024*u}")
    A("  s_waitcnt lgkmcnt(0)")
    A("  s_barrier")
    for w in range(4):
        A(f"  ds_read_b128 v[{vF+4*w}:{vF+4*w+3}], v11 offset:{4096*w}")
    A("  s_waitcnt lgkmcnt(2)")
    for r in range(4):
        A(f"  v_add_f32 v{vF+r}, v{vF+r}, v{vF+4+r}")
    A("  s_waitcnt lgkmcnt(0)")
    for r in range(4):
        A(f"  v_add_f32 v{vF+8+r}, v{vF+8+r}, v{vF+12+r}")
    for r in range(4):
        A(f"  v_add_f32 v{vF+r}, v{vF+r}, v{vF+8+r}")
    for r in range(4):
        A(f"  v_mul_f32 v{vF+r}, v{vF+r}, v{vL}")
    A(f"  v_cvt_pk_bf16_f32 v{vB}, v{vF}, v{vF+1}")
    A(f"  v_cvt_pk_bf16_f32 v{vB+1}, v{vF+2}, v{vF+3}")
    A("@ENDAUTO")
    A(f"  buffer_store_dwordx2 v[{vB}:{vB+1}], v6, s[12:15], s27 offen {spol}")
    if stamps:
        A("  s_add_u32 s3, s3, 1")
        A("  s_waitcnt vmcnt(0)")
        A("L_stamp:")
        A("  s_memrealtime s[42:43]")
        A("  s_getreg_b32 s46, hwreg(HW_REG_XCC_ID)")
        A("  s_getreg_b32 s47, hwreg(HW_REG_HW_ID)")
        A("  s_mul_i32 s30, s54, 5\n  s_add_u32 s30, s30, s3\n  s_lshl_b32 s30, s30, 4")
        A("  s_waitcnt lgkmcnt(0)")
        A("  v_mov_b32 v4, s40\n  v_mov_b32 v5, s42\n  v_mov_b32 v6, s46\n  v_mov_b32 v7, s47\n  v_mov_b32 v1, s30")
        A("  s_mov_b64 exec, 1")
        A("  global_store_dwordx4 v1, v[4:7], s[44:45]")
    A("L_end:")
    A("  s_endpgm")
    A('.section .rodata,"a"\n.p2align 6')
    A(f".amdhsa_kernel {KN}")
    A("  .amdhsa_next_free_vgpr 248\n  .amdhsa_next_free_sgpr 56\n  .amdhsa_accum_offset 248")
    A("  .amdhsa_group_segment_fixed_size 0\n  .amdhsa_kernarg_size 48\n  .amdhsa_user_sgpr_count 2")
    A("  .amdhsa_user_sgpr_kernarg_segment_ptr 1\n  .amdhsa_system_sgpr_workgroup_id_x 1\n.end_amdhsa_kernel")
    return place_pads("\n".join(L).split("\n"), pads, padgap)

def place_pads(lines, pads, gap):
    out, chains, auto, n, idx = [], {0: [], 1: []}, None, 0, False
    for ln in lines:
        if ln.startswith("@AUTO"):
            auto, n = int(ln[5:]), gap
            continue
        if ln == "@ENDAUTO":
            auto = None
            continue
        if ln == "@PADL":
            chains[0].append(len(out)); out.append(None)
            continue
        if auto is not None and ln.startswith("  "):
            if n >= gap and not idx and not ln.startswith(("  s_cselect", "  s_cbranch")):
                chains[auto].append(len(out)); out.append(None); n = 0
            n += 1
            if "s_set_gpr_idx_on" in ln: idx = True
            if "s_set_gpr_idx_off" in ln: idx = False
        out.append(ln)
    res = {}
    parts = {}
    for ch, pos in chains.items():
        if ch == 0:
            pos = pos[2:] + pos[:2]
        per = -(-len(pos) // 4)
        parts[ch] = [pos[k*per:(k+1)*per] for k in range(4)]
        for k, sub in enumerate(parts[ch]):
            for j, p in enumerate(sub):
                nxt = f"L_pad{ch}_{k}_{j+1}" if j + 1 < len(sub) else f"L_warm{ch}_ret"
                res[p] = f"L_pad{ch}_{k}_{j}:\n  s_cbranch_execz {nxt}"
    fin = []
    for i, ln in enumerate(out):
        if ln is None:
            if pads > (1 if "L_pad1" in res[i] else 0): fin.append(res[i])
        elif ln.startswith("@WARM"):
            ch = int(ln[5:])
            if pads <= ch: continue
            if ch == 1:
                fin.append("  s_cmp_lg_u32 s26, 12\n  s_cbranch_scc1 L_warm1_skip")
            fin.append("  s_mov_b64 exec, 0")
            for k in range(3):
                if parts[ch][k]:
                    fin.append(f"  s_cmp_eq_u32 s3, {k}\n  s_cbranch_scc1 L_pad{ch}_{k}_0")
            if parts[ch][3]:
                fin.append(f"  s_branch L_pad{ch}_3_0")
            fin.append(f"L_warm{ch}_ret:\n  s_mov_b64 exec, -1")
            if ch == 1:
                fin.append("L_warm1_skip:")
        else:
            fin.append(ln)
    return "\n".join(fin) + "\n"

if __name__ == "__main__":
    out = sys.argv[1]
    kw = {}
    for kv in sys.argv[2:]:
        a, b = kv.split("=")
        kw[a] = b.replace("+", " ") if a in ("pol", "spol", "W") else int(b)
    open(out, "w").write(gen(**kw))
```

```python
import gen3, sys
def diag(**kw):
    s = gen3.gen(**kw)
    s = s.replace("  v_lshrrev_b32 v1, 6, v0\n", "  s_memrealtime s[40:41]\n  v_lshrrev_b32 v1, 6, v0\n", 1)
    s = s.replace("  s_movk_i32 s33, 0x100                     ; group count at which this phase ends\n", "  s_movk_i32 s33, 5\n")
    s = s.replace("  s_lshl_b32 s10, 1, 20\n  s_lshl_b32 s11, 1, 17\n", "  s_lshl_b32 s10, 1, 20\n  s_not_b32 s11, 0\n".replace("s_not_b32 s11, 0", "s_lshl_b32 s11, 1, 17"), 1)
    a = s.index("  s_bitcmp1_b32 s28, 9\n")
    hook = """  s_cmp_lg_u32 s28, 5
  s_cbranch_scc1 L_h1
  s_memrealtime s[46:47]
  s_movk_i32 s33, 16
  s_branch L_load_loop
L_h1:
  s_cmp_lg_u32 s28, 16
  s_cbranch_scc1 L_h2
  s_memrealtime s[48:49]
  s_movk_i32 s33, 64
  s_branch L_load_loop
L_h2:
  s_cmp_lg_u32 s28, 64
  s_cbranch_scc1 L_h3
  s_memrealtime s[50:51]
  s_movk_i32 s33, 0x100
  s_branch L_load_loop
L_h3:
"""
    s = s[:a] + hook + s[a:]
    fin = """  s_waitcnt vmcnt(0)
  s_barrier
  s_memrealtime s[52:53]
  s_load_dwordx2 s[44:45], s[0:1], 32
  s_mov_b32 s33, 0
  s_cmp_eq_u32 s2, 0
  s_cbranch_scc1 L_dw
  s_mov_b32 s33, 16
  s_cmp_eq_u32 s2, 61
  s_cbranch_scc1 L_dw
  s_mov_b32 s33, 32
  s_cmp_eq_u32 s2, 132
  s_cbranch_scc1 L_dw
  s_mov_b32 s33, 48
  s_cmp_eq_u32 s2, 255
  s_cbranch_scc1 L_dw
  s_endpgm
L_dw:
  s_waitcnt lgkmcnt(0)
  s_sub_u32 s46, s46, s40
  s_sub_u32 s48, s48, s40
  s_sub_u32 s50, s50, s40
  s_sub_u32 s52, s52, s40
  v_mov_b32 v4, s46
  v_mov_b32 v5, s48
  v_mov_b32 v6, s50
  v_mov_b32 v7, s52
  v_mov_b32 v1, s33
  s_mov_b64 exec, 1
  global_store_dwordx4 v1, v[4:7], s[44:45]
  s_endpgm
"""
    s = s.replace("  s_waitcnt vmcnt(0)\n  s_barrier\n  s_endpgm\n", fin, 1)
    return s
if __name__ == "__main__":
    for p in (0, 1, 2):
        open(f"../var/diag4_p{p}.s", "w").write(diag(pads=p))
```

```python
import sys, struct, re

KN = "standalone__gqa_softmax__sampling_kernel"
HEADER = """; Kernarg layout for this problem (48 bytes, ptrs only, base s[0:1]):
"""

def f2u(x):
    return struct.unpack("<I", struct.pack("<f", x))[0]

def gen(W="20", pol="nt", spol="", stamps=0, prio=0, perm=0, rev=1, pads=0, R=3, padgap=7, tail=1, vpre=1):
    L = []
    A = L.append
    SLOT = 32768
    STAT = R * SLOT
    lds = STAT + 2048
    Ws = [int(x) for x in str(W).split(".")]
    Ws = (Ws * 4)[:4]
    Wmax = max(Ws)
    assert Wmax <= 32
    barg = (Wmax + 3) // 4 - 1
    C = (128 ** -0.5) * 1.4426950408889634
    A(HEADER.rstrip())
    if stamps:
        A("; stamps=1280")
    if stamps == 2:
        A("; prof=34")
    A(f"; @launch grid=(256,1,1) block=(320,1,1) lds={lds}")
    A('.amdgcn_target "amdgcn-amd-amdhsa--gfx950"')
    A(".text")
    A(f".globl {KN}\n.p2align 8\n.type {KN},@function\n{KN}:")
    A("  s_load_dwordx4 s[4:7], s[0:1], 8          ; K, V")
    if stamps:
        A("  s_memrealtime s[40:41]")
        A("  s_load_dwordx2 s[44:45], s[0:1], 40")
        A("  s_mov_b32 s54, s2")
    A("  v_lshrrev_b32 v1, 6, v0")
    A("  s_lshr_b32 s3, s2, 8")
    A("  s_cbranch_scc1 L_end")
    A("  v_readfirstlane_b32 s3, v1")
    A("  v_bfe_u32 v2, v0, 4, 2                    ; g = lane >> 4")
    A("  v_and_b32 v3, 15, v0                      ; i = lane & 15")
    if perm == 5:
        A("  s_mul_i32 s2, s2, 37\n  s_and_b32 s2, s2, 255\n  s_lshr_b32 s20, s2, 4\n  s_xor_b32 s2, s2, s20")
    A("  s_cmp_lg_u32 s3, 0")
    A("  s_cbranch_scc1 L_consumer")

    if prio:
        A(f"  s_setprio {prio}")
    A("  v_xor_b32 v4, v2, v3")
    A("  v_lshlrev_b32 v4, 4, v4")
    A("  v_lshl_add_u32 v8, v2, 8, v4")
    A("  v_xor_b32 v9, 64, v8")
    A("  s_movk_i32 s22, 0x80")
    A("  v_xor_b32 v10, s22, v8")
    A("  v_xor_b32 v11, s22, v9")
    A("  s_lshl_b32 s20, s2, 20")
    A("  s_lshl_b32 s10, 1, 20")
    A("  s_lshl_b32 s11, 1, 17")
    A("  s_mov_b32 m0, 0")
    A("  s_mov_b32 s23, 0")
    A("  s_mov_b32 s28, 0")
    A(f"  s_mov_b32 s30, {8 + barg}")
    A(f"  s_mov_b32 s31, {R*SLOT}")
    A("  s_movk_i32 s33, 0x100")
    if stamps == 2:
        A("  s_mov_b32 s52, 1")
    A("  s_waitcnt lgkmcnt(0)")
    if stamps == 2:
        A("  v_mov_b32 v20, s40")
    A("  s_add_u32 s8, s4, s20")
    A("  s_addc_u32 s9, s5, 0")
    def prof():
        A("  s_memrealtime s[50:51]")
        A("  s_waitcnt lgkmcnt(0)")
        A("  v_cmp_eq_u32 vcc, s52, v0")
        A("  v_mov_b32 v21, s50")
        A("  s_add_u32 s52, s52, 1")
        A("  v_cndmask_b32 v20, v20, v21, vcc")
    A("L_load_loop:")
    if stamps == 2:
        A("  s_and_b32 s53, s28, 15\n  s_cbranch_scc1 L_noprof")
        prof()
        A("L_noprof:")
    for i in range(4):
        A(f"  s_waitcnt vmcnt({Ws[i]-1})")
        A(f"  buffer_load_dwordx4 v{8+i}, s[8:11], s23 offen offset:{i*1024} {pol} lds")
    A("  s_cmp_lg_u32 s28, s30")
    A("  s_cbranch_scc1 L_load_nobar")
    A("  s_barrier")
    A("  s_add_u32 s30, s30, 8")
    A("L_load_nobar:")
    A("  s_addk_i32 m0, 0x1000")
    A("  s_add_u32 s28, s28, 1")
    A("  s_cmp_eq_u32 m0, s31")
    A("  s_cselect_b32 m0, 0, m0")
    if rev:
        A("  s_brev_b32 s23, s28")
        A("  s_lshr_b32 s23, s23, 29")
        A("  s_and_b32 s22, s28, 0xf8")
        A("  s_or_b32 s23, s23, s22")
        A("  s_lshl_b32 s23, s23, 12")
    else:
        A("  s_addk_i32 s23, 0x1000")
    A("  s_cmp_lg_u32 s28, s33")
    A("  s_cbranch_scc1 L_load_loop")
    A("@PADL")
    A("  s_bitcmp1_b32 s28, 9")
    A("  s_cbranch_scc1 L_load_done")
    A("  v_lshlrev_b32 v4, 1, v2")
    A("  v_xor_b32 v4, v4, v3")
    A("  v_lshlrev_b32 v4, 4, v4")
    A("  v_lshl_add_u32 v8, v2, 8, v4")
    A("  v_xor_b32 v9, 0x80, v8")
    A("  s_add_u32 s8, s6, s20")
    A("  s_addc_u32 s9, s7, 0")
    A("@PADL")
    A("  v_mov_b32 v10, v8")
    A("  v_mov_b32 v11, v9")
    A("  s_mov_b32 s23, 0")
    A("  s_movk_i32 s33, 0x200")
    A("  s_branch L_load_loop")
    A("L_load_done:")
    if tail:
        A("  s_barrier")
        A("  s_waitcnt vmcnt(8)")
        A("  s_barrier")
    A("  s_waitcnt vmcnt(0)")
    A("  s_barrier")
    if stamps == 2:
        prof()
        A("  s_lshl_b32 s53, s54, 8")
        A("  s_add_u32 s53, s53, 0x10000")
        A("  v_lshl_add_u32 v21, v0, 2, s53")
        A("  global_store_dword v21, v20, s[44:45]")
    if stamps:
        A("  s_branch L_stamp")
    else:
        A("  s_endpgm")

    vQ = vO = 16
    vF, vAcc, vB, vX = 48, 80, 84, 88
    vM, vL, vMC, vT = 92, 93, 94, 95
    aK, aV, vS = 96, 100, 120
    A("L_consumer:")
    A("  s_load_dwordx2 s[16:17], s[0:1], 0        ; Q")
    A("  s_load_dwordx2 s[18:19], s[0:1], 24       ; out")
    A("  v_and_b32 v0, 63, v0                      ; lane")
    A("  v_lshlrev_b32 v4, 8, v3")
    A("  v_lshl_add_u32 v6, v2, 4, v4")
    A("  v_xor_b32 v7, 0x800, v6")
    A("  s_lshl_b32 s20, s2, 11")
    A("  s_movk_i32 s10, 0x800")
    A("  s_lshl_b32 s11, 1, 17")
    A("  s_sub_u32 s3, s3, 1")
    A("  s_waitcnt lgkmcnt(0)")
    A("  s_add_u32 s8, s16, s20")
    A("  s_addc_u32 s9, s17, 0")
    for h in range(2):
        for j in range(4):
            r = vQ + 16*h + 4*j
            A(f"  buffer_load_dwordx4 v[{r}:{r+3}], v{6+h}, s[8:11], 0 offen offset:{64*j}")
    A("  s_add_u32 s12, s18, s20")
    A("  s_addc_u32 s13, s19, 0")
    A("  s_movk_i32 s14, 0x800")
    A("  s_lshl_b32 s15, 1, 17")
    A("  s_lshl_b32 s24, s3, 13")
    A("  v_xor_b32 v5, v2, v3")
    A("  v_lshl_add_u32 v5, v5, 4, v4")
    A(f"  v_add_u32 v{aK}, s24, v5")
    A(f"  v_xor_b32 v{aK+1}, 64, v{aK}")
    A(f"  v_xor_b32 v{aK+2}, 0x80, v{aK}")
    A(f"  v_xor_b32 v{aK+3}, 0xc0, v{aK}")
    A(f"  v_mov_b32 v{vM}, 0xff800000")
    A("  s_mov_b32 s26, 0")
    A("  s_mov_b32 s30, 0")
    A(f"  s_mov_b32 s32, {SLOT}")
    A("@WARM0")
    A("  s_waitcnt vmcnt(0)")
    if vpre:
        A("  s_lshl_b32 s20, s2, 20")
        A("  s_add_u32 s36, s6, s20")
        A("  s_addc_u32 s37, s7, 0")
        A("  v_mov_b32 v12, 0")
        A("  global_load_dword v12, v12, s[36:37] nt")

    def ring_step():
        A("  s_add_u32 s30, s30, s32")
        A(f"  s_cmp_eq_u32 s30, {R*SLOT}")
        A("  s_cselect_b32 s30, 0, s30")
        A(f"  s_cselect_b32 s31, {hex((1 << 32) - (R-1)*SLOT)}, s32")

    A("L_k_loop:")
    A("@AUTO0")
    ring_step()
    A("  s_barrier")
    for t in range(2):
        for j in range(4):
            r = vF + 16*t + 4*j
            A(f"  ds_read_b128 v[{r}:{r+3}], v{aK+j} offset:{t*4096}")
    for j in range(4):
        A(f"  v_add_u32 v{aK+j}, s31, v{aK+j}")
    for t in range(2):
        for j in range(4):
            r = vF + 16*t + 4*j
            A(f"  s_waitcnt lgkmcnt({7 - 4*t - j})")
            c = "0" if t == 0 and j == 0 else f"v[{vAcc}:{vAcc+3}]"
            A(f"  v_mfma_f32_16x16x32_bf16 v[{vAcc}:{vAcc+3}], v[{r}:{r+3}], v[{vQ+16*t+4*j}:{vQ+16*t+4*j+3}], {c}")
    A("  s_nop 7")
    A("  s_set_gpr_idx_on s26, gpr_idx(DST)")
    for r in range(4):
        A(f"  v_mov_b32 v{vS+r}, v{vAcc+r}")
    A("  s_set_gpr_idx_off")
    A(f"  v_max3_f32 v{vM}, v{vAcc}, v{vAcc+1}, v{vM}")
    A(f"  v_max3_f32 v{vM}, v{vAcc+2}, v{vAcc+3}, v{vM}")
    A("  s_add_u32 s26, s26, 4")
    A("@ENDAUTO")
    A("@WARM1")
    A("  s_cmp_lg_u32 s26, 128")
    A("  s_cbranch_scc1 L_k_loop")

    def lane_reduce(op, v):
        A(f"  v_mov_b32 v{vT}, v{v}")
        A("  s_nop 1")
        A(f"  v_permlane32_swap_b32 v{vT}, v{v}")
        A(f"  {op} v{v}, v{vT}, v{v}")
        A(f"  v_mov_b32 v{vT}, v{v}")
        A("  s_nop 1")
        A(f"  v_permlane16_swap_b32 v{vT}, v{v}")
        A(f"  {op} v{v}, v{vT}, v{v}")
        A("  s_nop 1")
        A(f"  {op}_dpp v{v}, v{v}, v{v} row_ror:8 row_mask:0xf bank_mask:0xf")

    def make_p():
        A("  s_set_gpr_idx_on s26, gpr_idx(SRC0)")
        for r in range(4):
            A(f"  v_mov_b32 v{vX+r}, v{vS+r}")
        A("  s_set_gpr_idx_off")
        for r in range(4):
            A(f"  v_fma_f32 v{vX+r}, v{vX+r}, s25, -v{vMC}")
        for r in range(4):
            A(f"  v_exp_f32 v{vX+r}, v{vX+r}")
        A("  s_add_u32 s26, s26, 4")
        A(f"  v_cvt_pk_bf16_f32 v{vB}, v{vX}, v{vX+1}")
        A(f"  v_cvt_pk_bf16_f32 v{vB+1}, v{vX+2}, v{vX+3}")
        A(f"  v_add_f32 v{vX}, v{vX}, v{vX+1}")
        A(f"  v_add_f32 v{vX+2}, v{vX+2}, v{vX+3}")
        A(f"  v_mov_b32_dpp v{vB+2}, v{vB} row_ror:8 row_mask:0xf bank_mask:0xf")
        A(f"  v_mov_b32_dpp v{vB+3}, v{vB+1} row_ror:8 row_mask:0xf bank_mask:0xf")
        A(f"  v_add_f32 v{vL}, v{vL}, v{vX}")
        A(f"  v_add_f32 v{vL}, v{vL}, v{vX+2}")

    def v_reads():
        for db in range(8):
            for t in range(2):
                r = vF + 4*db + 2*t
                A(f"  ds_read_b64_tr_b16 v[{r}:{r+1}], v{aV+db} offset:{t*4096}")

    def pv(extra=0):
        for db in range(8):
            A(f"  s_waitcnt lgkmcnt({min(15, 14 - 2*db + extra)})")
            A(f"  v_mfma_f32_16x16x32_bf16 v[{vO+4*db}:{vO+4*db+3}], v[{vF+4*db}:{vF+4*db+3}], v[{vB}:{vB+3}], v[{vO+4*db}:{vO+4*db+3}]")

    A("@AUTO1")
    lane_reduce("v_max_f32", vM)
    A("  s_lshl_b32 s27, s3, 8")
    A(f"  s_add_u32 s27, s27, {STAT}")
    A("  v_lshl_add_u32 v8, v0, 2, s27")
    A(f"  ds_write_b32 v8, v{vM}")
    A(f"  v_lshlrev_b32 v9, 2, v0")
    A(f"  v_add_u32 v9, {STAT}, v9")
    A("  v_lshrrev_b32 v5, 2, v0")
    A("  v_and_b32 v6, 7, v5")
    A("  v_lshlrev_b32 v6, 1, v6")
    A("  v_bfe_u32 v7, v0, 1, 1")
    A("  v_xor_b32 v6, v6, v7")
    A("  v_and_b32 v7, 1, v0")
    A("  v_lshlrev_b32 v7, 3, v7")
    A("  v_lshl_add_u32 v5, v5, 8, v7")
    A("  s_add_u32 s27, s24, s30")
    A("  v_add_u32 v5, s27, v5")
    A(f"  v_lshl_add_u32 v{aV}, v6, 4, v5")
    for db in range(1, 8):
        A(f"  v_xor_b32 v{aV+db}, {32*db}, v{aV}")
    for r in range(0, 32, 2):
        A(f"  v_mov_b64 v[{vO+r}:{vO+r+1}], 0")
    A(f"  v_mov_b32 v{vL}, 0")
    A(f"  s_mov_b32 s25, {hex(f2u(C))}")
    A("  s_mov_b32 s26, 0")
    ring_step()
    A("  s_waitcnt lgkmcnt(0)")
    A("  s_barrier")
    A(f"  ds_read2st64_b32 v[{vX}:{vX+1}], v9 offset0:0 offset1:1")
    A(f"  ds_read2st64_b32 v[{vX+2}:{vX+3}], v9 offset0:2 offset1:3")
    A("  s_waitcnt lgkmcnt(0)")
    A(f"  v_max3_f32 v{vM}, v{vX}, v{vX+1}, v{vX+2}")
    A(f"  v_max_f32 v{vM}, v{vM}, v{vX+3}")
    A(f"  v_mul_f32 v{vMC}, s25, v{vM}")
    make_p()
    A("  s_branch L_v_entry")
    A("; ---- V phase")
    A("L_v_loop:")
    ring_step()
    A("  s_barrier")
    A("L_v_entry:")
    v_reads()
    for db in range(8):
        A(f"  v_add_u32 v{aV+db}, s31, v{aV+db}")
    pv()
    make_p()
    A("  s_cmp_lg_u32 s26, 128")
    A("  s_cbranch_scc1 L_v_loop")

    if not tail:
        A("; ---- last V slot, row sums, cross-wave reduction")
        lane_reduce("v_add_f32", vL)
        A(f"  ds_write_b32 v8, v{vL} offset:1024")
        XCH = ((61 % R)) * SLOT
        A("  s_lshl_b32 s27, s3, 12")
        A(f"  s_add_u32 s27, s27, {XCH}")
        A("  v_lshl_add_u32 v10, v0, 4, s27")
        A("  s_lshl_b32 s27, s3, 10")
        A(f"  s_add_u32 s27, s27, {XCH}")
        A("  v_lshl_add_u32 v11, v0, 4, s27")
        A("  v_and_b32 v6, 7, v3")
        A("  v_lshlrev_b32 v6, 8, v6")
        A("  v_lshl_add_u32 v6, v2, 3, v6")
        A("  v_lshrrev_b32 v7, 3, v3")
        A("  v_lshl_add_u32 v6, v7, 5, v6")
        A("  s_lshl_b32 s27, s3, 6")
        A("  s_waitcnt lgkmcnt(0)")
        A("  s_barrier")
        v_reads()
        A(f"  ds_read2st64_b32 v[{vX}:{vX+1}], v9 offset0:4 offset1:5")
        A(f"  ds_read2st64_b32 v[{vX+2}:{vX+3}], v9 offset0:6 offset1:7")
        pv(2)
        A("  s_waitcnt lgkmcnt(0)")
        A(f"  v_add_f32 v{vX}, v{vX}, v{vX+1}")
        A(f"  v_add_f32 v{vX+2}, v{vX+2}, v{vX+3}")
        A(f"  v_add_f32 v{vX}, v{vX}, v{vX+2}")
        A(f"  v_rcp_f32 v{vL}, v{vX}")
        for u in range(4):
            for r in range(4):
                A(f"  v_mov_b32_dpp v{vO+8*u+r}, v{vO+8*u+4+r} row_ror:8 row_mask:0xf bank_mask:0xc")
            A(f"  ds_write_b128 v10, v[{vO+8*u}:{vO+8*u+3}] offset:{1024*u}")
        A("  s_waitcnt lgkmcnt(0)")
        A("  s_barrier")
        for w in range(4):
            A(f"  ds_read_b128 v[{vF+4*w}:{vF+4*w+3}], v11 offset:{4096*w}")
        A("  s_waitcnt lgkmcnt(2)")
        for r in range(4):
            A(f"  v_add_f32 v{vF+r}, v{vF+r}, v{vF+4+r}")
        A("  s_waitcnt lgkmcnt(0)")
        for r in range(4):
            A(f"  v_add_f32 v{vF+8+r}, v{vF+8+r}, v{vF+12+r}")
        for r in range(4):
            A(f"  v_add_f32 v{vF+r}, v{vF+r}, v{vF+8+r}")
        for r in range(4):
            A(f"  v_mul_f32 v{vF+r}, v{vF+r}, v{vL}")
        A(f"  v_cvt_pk_bf16_f32 v{vB}, v{vF}, v{vF+1}")
        A(f"  v_cvt_pk_bf16_f32 v{vB+1}, v{vF+2}, v{vF+3}")
    else:
        XCH = (61 % R) * SLOT
        PX = XCH + 16384
        vP, vA0, vA1 = 104, 80, 88
        A("  s_lshl_b32 s27, s3, 10")
        A(f"  s_add_u32 s27, s27, {XCH}")
        A("  v_lshl_add_u32 v11, v0, 4, s27")
        A(f"  ds_write_b128 v11, v[{vB}:{vB+3}] offset:16384")
        lane_reduce("v_add_f32", vL)
        A(f"  ds_write_b32 v8, v{vL} offset:1024")
        A("  s_lshl_b32 s27, s3, 12")
        A(f"  s_add_u32 s27, s27, {XCH}")
        A("  v_lshl_add_u32 v10, v0, 4, s27")
        for u in range(4):
            for r in range(4):
                A(f"  v_mov_b32_dpp v{vO+8*u+r}, v{vO+8*u+4+r} row_ror:8 row_mask:0xf bank_mask:0xc")
            A(f"  ds_write_b128 v10, v[{vO+8*u}:{vO+8*u+3}] offset:{1024*u}")
        A(f"  v_subrev_u32 v4, s24, v{aV}")
        A("  s_lshl_b32 s27, s3, 6")
        A("  v_xor_b32 v4, s27, v4")
        A("  v_xor_b32 v5, 32, v4")
        A("  v_lshlrev_b32 v7, 4, v0")
        A(f"  v_add_u32 v7, {PX}, v7")
        A("  s_waitcnt lgkmcnt(0)")
        A("  s_barrier")
        for w in range(4):
            A(f"  ds_read_b128 v[{vF+4*w}:{vF+4*w+3}], v11 offset:{4096*w}")
        A(f"  ds_read2st64_b32 v[{vO}:{vO+1}], v9 offset0:4 offset1:5")
        A(f"  ds_read2st64_b32 v[{vO+2}:{vO+3}], v9 offset0:6 offset1:7")
        for w in range(4):
            A(f"  ds_read_b128 v[{vP+4*w}:{vP+4*w+3}], v7 offset:{1024*w}")
        A("  v_and_b32 v6, 7, v3")
        A("  v_lshlrev_b32 v6, 8, v6")
        A("  v_lshl_add_u32 v6, v2, 3, v6")
        A("  v_lshrrev_b32 v10, 3, v3")
        A("  v_lshl_add_u32 v6, v10, 5, v6")
        A("  s_waitcnt lgkmcnt(4)")
        for r in range(4):
            A(f"  v_add_f32 v{vF+r}, v{vF+r}, v{vF+4+r}")
        for r in range(4):
            A(f"  v_add_f32 v{vF+8+r}, v{vF+8+r}, v{vF+12+r}")
        for r in range(4):
            A(f"  v_add_f32 v{vA0+r}, v{vF+r}, v{vF+8+r}")
        A(f"  v_add_f32 v{vO}, v{vO}, v{vO+1}")
        A(f"  v_add_f32 v{vO+2}, v{vO+2}, v{vO+3}")
        for r in range(4):
            A(f"  v_mov_b32_dpp v{vA1+r}, v{vA0+r} row_ror:8 row_mask:0xf bank_mask:0xf")
        A(f"  v_add_f32 v{vO}, v{vO}, v{vO+2}")
        A(f"  v_rcp_f32 v{vL}, v{vO}")
        A("  s_waitcnt lgkmcnt(0)")
        def last(ks):
            A("  s_barrier")
            for k in ks:
                for h in range(2):
                    for t in range(2):
                        r = vF + 8*k + 4*h + 2*t
                        A(f"  ds_read_b64_tr_b16 v[{r}:{r+1}], v{4+h} offset:{k*8192 + t*4096}")
            n = 4 * len(ks)
            for k in ks:
                for h in range(2):
                    n -= 2
                    acc = (vA0, vA1)[h]
                    r = vF + 8*k + 4*h
                    A(f"  s_waitcnt lgkmcnt({n})")
                    A(f"  v_mfma_f32_16x16x32_bf16 v[{acc}:{acc+3}], v[{r}:{r+3}], v[{vP+4*k}:{vP+4*k+3}], v[{acc}:{acc+3}]")
        last([0, 1, 2])
        last([3])
        A("  s_nop 7")
        for r in range(4):
            A(f"  v_mov_b32_dpp v{vA0+r}, v{vA1+r} row_ror:8 row_mask:0xf bank_mask:0xc")
        for r in range(4):
            A(f"  v_mul_f32 v{vA0+r}, v{vA0+r}, v{vL}")
        A(f"  v_cvt_pk_bf16_f32 v{vB}, v{vA0}, v{vA0+1}")
        A(f"  v_cvt_pk_bf16_f32 v{vB+1}, v{vA0+2}, v{vA0+3}")
    A("@ENDAUTO")
    A(f"  buffer_store_dwordx2 v[{vB}:{vB+1}], v6, s[12:15], s27 offen {spol}")
    if stamps:
        A("  s_add_u32 s3, s3, 1")
        A("  s_waitcnt vmcnt(0)")
        A("L_stamp:")
        A("  s_memrealtime s[42:43]")
        A("  s_getreg_b32 s46, hwreg(HW_REG_XCC_ID)")
        A("  s_getreg_b32 s47, hwreg(HW_REG_HW_ID)")
        A("  s_mul_i32 s30, s54, 5\n  s_add_u32 s30, s30, s3\n  s_lshl_b32 s30, s30, 4")
        A("  s_waitcnt lgkmcnt(0)")
        A("  v_mov_b32 v4, s40\n  v_mov_b32 v5, s42\n  v_mov_b32 v6, s46\n  v_mov_b32 v7, s47\n  v_mov_b32 v1, s30")
        A("  s_mov_b64 exec, 1")
        A("  global_store_dwordx4 v1, v[4:7], s[44:45]")
    A("L_end:")
    A("  s_endpgm")
    A('.section .rodata,"a"\n.p2align 6')
    A(f".amdhsa_kernel {KN}")
    A("  .amdhsa_next_free_vgpr 248\n  .amdhsa_next_free_sgpr 56\n  .amdhsa_accum_offset 248")
    A("  .amdhsa_group_segment_fixed_size 0\n  .amdhsa_kernarg_size 48\n  .amdhsa_user_sgpr_count 2")
    A("  .amdhsa_user_sgpr_kernarg_segment_ptr 1\n  .amdhsa_system_sgpr_workgroup_id_x 1\n.end_amdhsa_kernel")
    return place_pads("\n".join(L).split("\n"), pads, padgap)

def place_pads(lines, pads, gap):
    out, chains, auto, n, idx = [], {0: [], 1: []}, None, 0, False
    for ln in lines:
        if ln.startswith("@AUTO"):
            auto, n = int(ln[5:]), gap
            continue
        if ln == "@ENDAUTO":
            auto = None
            continue
        if ln == "@PADL":
            chains[0].append(len(out)); out.append(None)
            continue
        if auto is not None and ln.startswith("  "):
            if n >= gap and not idx and not ln.startswith(("  s_cselect", "  s_cbranch")):
                chains[auto].append(len(out)); out.append(None); n = 0
            n += 1
            if "s_set_gpr_idx_on" in ln: idx = True
            if "s_set_gpr_idx_off" in ln: idx = False
        out.append(ln)
    res = {}
    parts = {}
    for ch, pos in chains.items():
        if ch == 0:
            pos = pos[2:] + pos[:2]
        per = -(-len(pos) // 4)
        parts[ch] = [pos[k*per:(k+1)*per] for k in range(4)]
        for k, sub in enumerate(parts[ch]):
            for j, p in enumerate(sub):
                nxt = f"L_pad{ch}_{k}_{j+1}" if j + 1 < len(sub) else f"L_warm{ch}_ret"
                res[p] = f"L_pad{ch}_{k}_{j}:\n  s_cbranch_execz {nxt}"
    fin = []
    for i, ln in enumerate(out):
        if ln is None:
            if pads > (1 if "L_pad1" in res[i] else 0): fin.append(res[i])
        elif ln.startswith("@WARM"):
            ch = int(ln[5:])
            if pads <= ch: continue
            if ch == 1:
                fin.append("  s_cmp_lg_u32 s26, 12\n  s_cbranch_scc1 L_warm1_skip")
            fin.append("  s_mov_b64 exec, 0")
            for k in range(3):
                if parts[ch][k]:
                    fin.append(f"  s_cmp_eq_u32 s3, {k}\n  s_cbranch_scc1 L_pad{ch}_{k}_0")
            if parts[ch][3]:
                fin.append(f"  s_branch L_pad{ch}_3_0")
            fin.append(f"L_warm{ch}_ret:\n  s_mov_b64 exec, -1")
            if ch == 1:
                fin.append("L_warm1_skip:")
        else:
            fin.append(ln)
    return "\n".join(fin) + "\n"

if __name__ == "__main__":
    out = sys.argv[1]
    kw = {}
    for kv in sys.argv[2:]:
        a, b = kv.split("=")
        kw[a] = b.replace("+", " ") if a in ("pol", "spol", "W") else int(b)
    open(out, "w").write(gen(**kw))
```

```python
import sys, struct, re

KN = "standalone__gqa_softmax__sampling_kernel"
HEADER = """; Kernarg layout for this problem (48 bytes, ptrs only, base s[0:1]):
"""

def f2u(x):
    return struct.unpack("<I", struct.pack("<f", x))[0]

def gen(W="20", pol="nt", spol="", stamps=0, prio=0, perm=0, rev=1, pads=0, R=3, padgap=7, tail=1, vpre=1, pat="13.15"):
    L = []
    A = L.append
    SLOT = 32768
    STAT = R * SLOT
    lds = STAT + 2048
    Ws = [int(x) for x in str(W).split(".")]
    Ws = (Ws * 4)[:4]
    Wmax = max(Ws)
    assert Wmax <= 32
    barg = (Wmax + 3) // 4 - 1
    C = (128 ** -0.5) * 1.4426950408889634
    A(HEADER.rstrip())
    if stamps:
        A("; stamps=1280")
    if stamps == 2:
        A("; prof=34")
    A(f"; @launch grid=(256,1,1) block=(320,1,1) lds={lds}")
    A('.amdgcn_target "amdgcn-amd-amdhsa--gfx950"')
    A(".text")
    A(f".globl {KN}\n.p2align 8\n.type {KN},@function\n{KN}:")
    A("  s_load_dwordx4 s[4:7], s[0:1], 8          ; K, V")
    if stamps:
        A("  s_memrealtime s[40:41]")
        A("  s_load_dwordx2 s[44:45], s[0:1], 40")
        A("  s_mov_b32 s54, s2")
    A("  v_lshrrev_b32 v1, 6, v0")
    A("  s_lshr_b32 s3, s2, 8")
    A("  s_cbranch_scc1 L_end")
    A("  v_readfirstlane_b32 s3, v1")
    A("  v_bfe_u32 v2, v0, 4, 2                    ; g = lane >> 4")
    A("  v_and_b32 v3, 15, v0                      ; i = lane & 15")
    if perm == 5:
        A("  s_mul_i32 s2, s2, 37\n  s_and_b32 s2, s2, 255\n  s_lshr_b32 s20, s2, 4\n  s_xor_b32 s2, s2, s20")
    A("  s_cmp_lg_u32 s3, 0")
    A("  s_cbranch_scc1 L_consumer")

    if prio:
        A(f"  s_setprio {prio}")
    A("  v_xor_b32 v4, v2, v3")
    A("  v_lshlrev_b32 v4, 4, v4")
    A("  v_lshl_add_u32 v8, v2, 8, v4")
    if pat:
        b0, b1 = (int(x) for x in pat.split("."))
        hop = [0, (1 << b0) - 1024, (1 << b1) - 2048, (1 << b0) + (1 << b1) - 3072]
        holes = (1 << b0) | (1 << b1)
        for n in range(1, 4):
            A(f"  v_xor_b32 v{8+n}, {hex(hop[n] | 64*n)}, v8")
        A(f"  s_lshl_b32 s29, {holes >> min(b0, b1)}, {min(b0, b1)}")
    else:
        A("  v_xor_b32 v9, 64, v8")
        A("  s_movk_i32 s22, 0x80")
        A("  v_xor_b32 v10, s22, v8")
        A("  v_xor_b32 v11, s22, v9")
    A("  s_lshl_b32 s20, s2, 20")
    A("  s_lshl_b32 s10, 1, 20")
    A("  s_lshl_b32 s11, 1, 17")
    A("  s_mov_b32 m0, 0")
    A("  s_mov_b32 s23, 0")
    A("  s_mov_b32 s28, 0")
    A(f"  s_mov_b32 s30, {8 + barg}")
    A(f"  s_mov_b32 s31, {R*SLOT}")
    A("  s_movk_i32 s33, 0x100")
    if stamps == 2:
        A("  s_mov_b32 s52, 1")
    A("  s_waitcnt lgkmcnt(0)")
    if stamps == 2:
        A("  v_mov_b32 v20, s40")
    A("  s_add_u32 s8, s4, s20")
    A("  s_addc_u32 s9, s5, 0")
    def prof():
        A("  s_memrealtime s[50:51]")
        A("  s_waitcnt lgkmcnt(0)")
        A("  v_cmp_eq_u32 vcc, s52, v0")
        A("  v_mov_b32 v21, s50")
        A("  s_add_u32 s52, s52, 1")
        A("  v_cndmask_b32 v20, v20, v21, vcc")
    A("L_load_loop:")
    if stamps == 2:
        A("  s_and_b32 s53, s28, 15\n  s_cbranch_scc1 L_noprof")
        prof()
        A("L_noprof:")
    for i in range(4):
        A(f"  s_waitcnt vmcnt({Ws[i]-1})")
        A(f"  buffer_load_dwordx4 v{8+i}, s[8:11], s23 offen offset:{i*1024} {pol} lds")
    A("  s_cmp_lg_u32 s28, s30")
    A("  s_cbranch_scc1 L_load_nobar")
    A("  s_barrier")
    A("  s_add_u32 s30, s30, 8")
    A("L_load_nobar:")
    A("  s_addk_i32 m0, 0x1000")
    A("  s_add_u32 s28, s28, 1")
    A("  s_cmp_eq_u32 m0, s31")
    A("  s_cselect_b32 m0, 0, m0")
    if pat:
        A("  s_or_b32 s23, s23, s29")
        A("  s_addk_i32 s23, 0x400")
        A("  s_andn2_b32 s23, s23, s29")
    elif rev:
        A("  s_brev_b32 s23, s28")
        A("  s_lshr_b32 s23, s23, 29")
        A("  s_and_b32 s22, s28, 0xf8")
        A("  s_or_b32 s23, s23, s22")
        A("  s_lshl_b32 s23, s23, 12")
    else:
        A("  s_addk_i32 s23, 0x1000")
    A("  s_cmp_lg_u32 s28, s33")
    A("  s_cbranch_scc1 L_load_loop")
    A("@PADL")
    A("  s_bitcmp1_b32 s28, 9")
    A("  s_cbranch_scc1 L_load_done")
    A("  v_lshlrev_b32 v4, 1, v2")
    A("  v_xor_b32 v4, v4, v3")
    A("  v_lshlrev_b32 v4, 4, v4")
    A("  v_lshl_add_u32 v8, v2, 8, v4")
    A(f"  v_xor_b32 v9, {hex((hop[1] if pat else 0) | 0x80)}, v8")
    A("  s_add_u32 s8, s6, s20")
    A("  s_addc_u32 s9, s7, 0")
    A("@PADL")
    if pat:
        A(f"  v_xor_b32 v10, {hex(hop[2])}, v8")
        A(f"  v_xor_b32 v11, {hex(hop[3] | 0x80)}, v8")
    else:
        A("  v_mov_b32 v10, v8")
        A("  v_mov_b32 v11, v9")
    A("  s_mov_b32 s23, 0")
    A("  s_movk_i32 s33, 0x200")
    A("  s_branch L_load_loop")
    A("L_load_done:")
    if tail:
        A("  s_barrier")
        A("  s_waitcnt vmcnt(8)")
        A("  s_barrier")
    A("  s_waitcnt vmcnt(0)")
    A("  s_barrier")
    if stamps == 2:
        prof()
        A("  s_lshl_b32 s53, s54, 8")
        A("  s_add_u32 s53, s53, 0x10000")
        A("  v_lshl_add_u32 v21, v0, 2, s53")
        A("  global_store_dword v21, v20, s[44:45]")
    if stamps:
        A("  s_branch L_stamp")
    else:
        A("  s_endpgm")

    vQ = vO = 16
    vF, vAcc, vB, vX = 48, 80, 84, 88
    vM, vL, vMC, vT = 92, 93, 94, 95
    aK, aV, vS = 96, 100, 120
    A("L_consumer:")
    A("  s_load_dwordx2 s[16:17], s[0:1], 0        ; Q")
    A("  s_load_dwordx2 s[18:19], s[0:1], 24       ; out")
    A("  v_and_b32 v0, 63, v0                      ; lane")
    A("  v_lshlrev_b32 v4, 8, v3")
    A("  v_lshl_add_u32 v6, v2, 4, v4")
    A("  v_xor_b32 v7, 0x800, v6")
    A("  s_lshl_b32 s20, s2, 11")
    A("  s_movk_i32 s10, 0x800")
    A("  s_lshl_b32 s11, 1, 17")
    A("  s_sub_u32 s3, s3, 1")
    A("  s_waitcnt lgkmcnt(0)")
    A("  s_add_u32 s8, s16, s20")
    A("  s_addc_u32 s9, s17, 0")
    for h in range(2):
        for j in range(4):
            r = vQ + 16*h + 4*j
            A(f"  buffer_load_dwordx4 v[{r}:{r+3}], v{6+h}, s[8:11], 0 offen offset:{64*j}")
    A("  s_add_u32 s12, s18, s20")
    A("  s_addc_u32 s13, s19, 0")
    A("  s_movk_i32 s14, 0x800")
    A("  s_lshl_b32 s15, 1, 17")
    A("  s_lshl_b32 s24, s3, 13")
    A("  v_xor_b32 v5, v2, v3")
    A("  v_lshl_add_u32 v5, v5, 4, v4")
    A(f"  v_add_u32 v{aK}, s24, v5")
    A(f"  v_xor_b32 v{aK+1}, 64, v{aK}")
    A(f"  v_xor_b32 v{aK+2}, 0x80, v{aK}")
    A(f"  v_xor_b32 v{aK+3}, 0xc0, v{aK}")
    A(f"  v_mov_b32 v{vM}, 0xff800000")
    A("  s_mov_b32 s26, 0")
    A("  s_mov_b32 s30, 0")
    A(f"  s_mov_b32 s32, {SLOT}")
    A("@WARM0")
    A("  s_waitcnt vmcnt(0)")
    if vpre:
        A("  s_lshl_b32 s20, s2, 20")
        A("  s_add_u32 s36, s6, s20")
        A("  s_addc_u32 s37, s7, 0")
        A("  v_mov_b32 v12, 0")
        A("  global_load_dword v12, v12, s[36:37] nt")

    def ring_step():
        A("  s_add_u32 s30, s30, s32")
        A(f"  s_cmp_eq_u32 s30, {R*SLOT}")
        A("  s_cselect_b32 s30, 0, s30")
        A(f"  s_cselect_b32 s31, {hex((1 << 32) - (R-1)*SLOT)}, s32")

    A("L_k_loop:")
    A("@AUTO0")
    ring_step()
    A("  s_barrier")
    for t in range(2):
        for j in range(4):
            r = vF + 16*t + 4*j
            A(f"  ds_read_b128 v[{r}:{r+3}], v{aK+j} offset:{t*4096}")
    for j in range(4):
        A(f"  v_add_u32 v{aK+j}, s31, v{aK+j}")
    for t in range(2):
        for j in range(4):
            r = vF + 16*t + 4*j
            A(f"  s_waitcnt lgkmcnt({7 - 4*t - j})")
            c = "0" if t == 0 and j == 0 else f"v[{vAcc}:{vAcc+3}]"
            A(f"  v_mfma_f32_16x16x32_bf16 v[{vAcc}:{vAcc+3}], v[{r}:{r+3}], v[{vQ+16*t+4*j}:{vQ+16*t+4*j+3}], {c}")
    A("  s_nop 7")
    A("  s_set_gpr_idx_on s26, gpr_idx(DST)")
    for r in range(4):
        A(f"  v_mov_b32 v{vS+r}, v{vAcc+r}")
    A("  s_set_gpr_idx_off")
    A(f"  v_max3_f32 v{vM}, v{vAcc}, v{vAcc+1}, v{vM}")
    A(f"  v_max3_f32 v{vM}, v{vAcc+2}, v{vAcc+3}, v{vM}")
    A("  s_add_u32 s26, s26, 4")
    A("@ENDAUTO")
    A("@WARM1")
    A("  s_cmp_lg_u32 s26, 128")
    A("  s_cbranch_scc1 L_k_loop")

    def lane_reduce(op, v):
        A(f"  v_mov_b32 v{vT}, v{v}")
        A("  s_nop 1")
        A(f"  v_permlane32_swap_b32 v{vT}, v{v}")
        A(f"  {op} v{v}, v{vT}, v{v}")
        A(f"  v_mov_b32 v{vT}, v{v}")
        A("  s_nop 1")
        A(f"  v_permlane16_swap_b32 v{vT}, v{v}")
        A(f"  {op} v{v}, v{vT}, v{v}")
        A("  s_nop 1")
        A(f"  {op}_dpp v{v}, v{v}, v{v} row_ror:8 row_mask:0xf bank_mask:0xf")

    def make_p():
        A("  s_set_gpr_idx_on s26, gpr_idx(SRC0)")
        for r in range(4):
            A(f"  v_mov_b32 v{vX+r}, v{vS+r}")
        A("  s_set_gpr_idx_off")
        for r in range(4):
            A(f"  v_fma_f32 v{vX+r}, v{vX+r}, s25, -v{vMC}")
        for r in range(4):
            A(f"  v_exp_f32 v{vX+r}, v{vX+r}")
        A("  s_add_u32 s26, s26, 4")
        A(f"  v_cvt_pk_bf16_f32 v{vB}, v{vX}, v{vX+1}")
        A(f"  v_cvt_pk_bf16_f32 v{vB+1}, v{vX+2}, v{vX+3}")
        A(f"  v_add_f32 v{vX}, v{vX}, v{vX+1}")
        A(f"  v_add_f32 v{vX+2}, v{vX+2}, v{vX+3}")
        A(f"  v_mov_b32_dpp v{vB+2}, v{vB} row_ror:8 row_mask:0xf bank_mask:0xf")
        A(f"  v_mov_b32_dpp v{vB+3}, v{vB+1} row_ror:8 row_mask:0xf bank_mask:0xf")
        A(f"  v_add_f32 v{vL}, v{vL}, v{vX}")
        A(f"  v_add_f32 v{vL}, v{vL}, v{vX+2}")

    def v_reads():
        for db in range(8):
            for t in range(2):
                r = vF + 4*db + 2*t
                A(f"  ds_read_b64_tr_b16 v[{r}:{r+1}], v{aV+db} offset:{t*4096}")

    def pv(extra=0):
        for db in range(8):
            A(f"  s_waitcnt lgkmcnt({min(15, 14 - 2*db + extra)})")
            A(f"  v_mfma_f32_16x16x32_bf16 v[{vO+4*db}:{vO+4*db+3}], v[{vF+4*db}:{vF+4*db+3}], v[{vB}:{vB+3}], v[{vO+4*db}:{vO+4*db+3}]")

    A("@AUTO1")
    lane_reduce("v_max_f32", vM)
    A("  s_lshl_b32 s27, s3, 8")
    A(f"  s_add_u32 s27, s27, {STAT}")
    A("  v_lshl_add_u32 v8, v0, 2, s27")
    A(f"  ds_write_b32 v8, v{vM}")
    A(f"  v_lshlrev_b32 v9, 2, v0")
    A(f"  v_add_u32 v9, {STAT}, v9")
    A("  v_lshrrev_b32 v5, 2, v0")
    A("  v_and_b32 v6, 7, v5")
    A("  v_lshlrev_b32 v6, 1, v6")
    A("  v_bfe_u32 v7, v0, 1, 1")
    A("  v_xor_b32 v6, v6, v7")
    A("  v_and_b32 v7, 1, v0")
    A("  v_lshlrev_b32 v7, 3, v7")
    A("  v_lshl_add_u32 v5, v5, 8, v7")
    A("  s_add_u32 s27, s24, s30")
    A("  v_add_u32 v5, s27, v5")
    A(f"  v_lshl_add_u32 v{aV}, v6, 4, v5")
    for db in range(1, 8):
        A(f"  v_xor_b32 v{aV+db}, {32*db}, v{aV}")
    for r in range(0, 32, 2):
        A(f"  v_mov_b64 v[{vO+r}:{vO+r+1}], 0")
    A(f"  v_mov_b32 v{vL}, 0")
    A(f"  s_mov_b32 s25, {hex(f2u(C))}")
    A("  s_mov_b32 s26, 0")
    ring_step()
    A("  s_waitcnt lgkmcnt(0)")
    A("  s_barrier")
    A(f"  ds_read2st64_b32 v[{vX}:{vX+1}], v9 offset0:0 offset1:1")
    A(f"  ds_read2st64_b32 v[{vX+2}:{vX+3}], v9 offset0:2 offset1:3")
    A("  s_waitcnt lgkmcnt(0)")
    A(f"  v_max3_f32 v{vM}, v{vX}, v{vX+1}, v{vX+2}")
    A(f"  v_max_f32 v{vM}, v{vM}, v{vX+3}")
    A(f"  v_mul_f32 v{vMC}, s25, v{vM}")
    make_p()
    A("  s_branch L_v_entry")
    A("; ---- V phase")
    A("L_v_loop:")
    ring_step()
    A("  s_barrier")
    A("L_v_entry:")
    v_reads()
    for db in range(8):
        A(f"  v_add_u32 v{aV+db}, s31, v{aV+db}")
    pv()
    make_p()
    A("  s_cmp_lg_u32 s26, 128")
    A("  s_cbranch_scc1 L_v_loop")

    if not tail:
        A("; ---- last V slot, row sums, cross-wave reduction")
        lane_reduce("v_add_f32", vL)
        A(f"  ds_write_b32 v8, v{vL} offset:1024")
        XCH = ((61 % R)) * SLOT
        A("  s_lshl_b32 s27, s3, 12")
        A(f"  s_add_u32 s27, s27, {XCH}")
        A("  v_lshl_add_u32 v10, v0, 4, s27")
        A("  s_lshl_b32 s27, s3, 10")
        A(f"  s_add_u32 s27, s27, {XCH}")
        A("  v_lshl_add_u32 v11, v0, 4, s27")
        A("  v_and_b32 v6, 7, v3")
        A("  v_lshlrev_b32 v6, 8, v6")
        A("  v_lshl_add_u32 v6, v2, 3, v6")
        A("  v_lshrrev_b32 v7, 3, v3")
        A("  v_lshl_add_u32 v6, v7, 5, v6")
        A("  s_lshl_b32 s27, s3, 6")
        A("  s_waitcnt lgkmcnt(0)")
        A("  s_barrier")
        v_reads()
        A(f"  ds_read2st64_b32 v[{vX}:{vX+1}], v9 offset0:4 offset1:5")
        A(f"  ds_read2st64_b32 v[{vX+2}:{vX+3}], v9 offset0:6 offset1:7")
        pv(2)
        A("  s_waitcnt lgkmcnt(0)")
        A(f"  v_add_f32 v{vX}, v{vX}, v{vX+1}")
        A(f"  v_add_f32 v{vX+2}, v{vX+2}, v{vX+3}")
        A(f"  v_add_f32 v{vX}, v{vX}, v{vX+2}")
        A(f"  v_rcp_f32 v{vL}, v{vX}")
        for u in range(4):
            for r in range(4):
                A(f"  v_mov_b32_dpp v{vO+8*u+r}, v{vO+8*u+4+r} row_ror:8 row_mask:0xf bank_mask:0xc")
            A(f"  ds_write_b128 v10, v[{vO+8*u}:{vO+8*u+3}] offset:{1024*u}")
        A("  s_waitcnt lgkmcnt(0)")
        A("  s_barrier")
        for w in range(4):
            A(f"  ds_read_b128 v[{vF+4*w}:{vF+4*w+3}], v11 offset:{4096*w}")
        A("  s_waitcnt lgkmcnt(2)")
        for r in range(4):
            A(f"  v_add_f32 v{vF+r}, v{vF+r}, v{vF+4+r}")
        A("  s_waitcnt lgkmcnt(0)")
        for r in range(4):
            A(f"  v_add_f32 v{vF+8+r}, v{vF+8+r}, v{vF+12+r}")
        for r in range(4):
            A(f"  v_add_f32 v{vF+r}, v{vF+r}, v{vF+8+r}")
        for r in range(4):
            A(f"  v_mul_f32 v{vF+r}, v{vF+r}, v{vL}")
        A(f"  v_cvt_pk_bf16_f32 v{vB}, v{vF}, v{vF+1}")
        A(f"  v_cvt_pk_bf16_f32 v{vB+1}, v{vF+2}, v{vF+3}")
    else:
        XCH = (61 % R) * SLOT
        PX = XCH + 16384
        vP, vA0, vA1 = 104, 80, 88
        A("  s_lshl_b32 s27, s3, 10")
        A(f"  s_add_u32 s27, s27, {XCH}")
        A("  v_lshl_add_u32 v11, v0, 4, s27")
        A(f"  ds_write_b128 v11, v[{vB}:{vB+3}] offset:16384")
        lane_reduce("v_add_f32", vL)
        A(f"  ds_write_b32 v8, v{vL} offset:1024")
        A("  s_lshl_b32 s27, s3, 12")
        A(f"  s_add_u32 s27, s27, {XCH}")
        A("  v_lshl_add_u32 v10, v0, 4, s27")
        for u in range(4):
            for r in range(4):
                A(f"  v_mov_b32_dpp v{vO+8*u+r}, v{vO+8*u+4+r} row_ror:8 row_mask:0xf bank_mask:0xc")
            A(f"  ds_write_b128 v10, v[{vO+8*u}:{vO+8*u+3}] offset:{1024*u}")
        A(f"  v_subrev_u32 v4, s24, v{aV}")
        A("  s_lshl_b32 s27, s3, 6")
        A("  v_xor_b32 v4, s27, v4")
        A("  v_xor_b32 v5, 32, v4")
        A("  v_lshlrev_b32 v7, 4, v0")
        A(f"  v_add_u32 v7, {PX}, v7")
        A("  s_waitcnt lgkmcnt(0)")
        A("  s_barrier")
        for w in range(4):
            A(f"  ds_read_b128 v[{vF+4*w}:{vF+4*w+3}], v11 offset:{4096*w}")
        A(f"  ds_read2st64_b32 v[{vO}:{vO+1}], v9 offset0:4 offset1:5")
        A(f"  ds_read2st64_b32 v[{vO+2}:{vO+3}], v9 offset0:6 offset1:7")
        for w in range(4):
            A(f"  ds_read_b128 v[{vP+4*w}:{vP+4*w+3}], v7 offset:{1024*w}")
        A("  v_and_b32 v6, 7, v3")
        A("  v_lshlrev_b32 v6, 8, v6")
        A("  v_lshl_add_u32 v6, v2, 3, v6")
        A("  v_lshrrev_b32 v10, 3, v3")
        A("  v_lshl_add_u32 v6, v10, 5, v6")
        A("  s_waitcnt lgkmcnt(4)")
        for r in range(4):
            A(f"  v_add_f32 v{vF+r}, v{vF+r}, v{vF+4+r}")
        for r in range(4):
            A(f"  v_add_f32 v{vF+8+r}, v{vF+8+r}, v{vF+12+r}")
        for r in range(4):
            A(f"  v_add_f32 v{vA0+r}, v{vF+r}, v{vF+8+r}")
        A(f"  v_add_f32 v{vO}, v{vO}, v{vO+1}")
        A(f"  v_add_f32 v{vO+2}, v{vO+2}, v{vO+3}")
        for r in range(4):
            A(f"  v_mov_b32_dpp v{vA1+r}, v{vA0+r} row_ror:8 row_mask:0xf bank_mask:0xf")
        A(f"  v_add_f32 v{vO}, v{vO}, v{vO+2}")
        A(f"  v_rcp_f32 v{vL}, v{vO}")
        A("  s_waitcnt lgkmcnt(0)")
        def last(ks):
            A("  s_barrier")
            for k in ks:
                for h in range(2):
                    for t in range(2):
                        r = vF + 8*k + 4*h + 2*t
                        A(f"  ds_read_b64_tr_b16 v[{r}:{r+1}], v{4+h} offset:{k*8192 + t*4096}")
            n = 4 * len(ks)
            for k in ks:
                for h in range(2):
                    n -= 2
                    acc = (vA0, vA1)[h]
                    r = vF + 8*k + 4*h
                    A(f"  s_waitcnt lgkmcnt({n})")
                    A(f"  v_mfma_f32_16x16x32_bf16 v[{acc}:{acc+3}], v[{r}:{r+3}], v[{vP+4*k}:{vP+4*k+3}], v[{acc}:{acc+3}]")
        last([0, 1, 2])
        last([3])
        A("  s_nop 7")
        for r in range(4):
            A(f"  v_mov_b32_dpp v{vA0+r}, v{vA1+r} row_ror:8 row_mask:0xf bank_mask:0xc")
        for r in range(4):
            A(f"  v_mul_f32 v{vA0+r}, v{vA0+r}, v{vL}")
        A(f"  v_cvt_pk_bf16_f32 v{vB}, v{vA0}, v{vA0+1}")
        A(f"  v_cvt_pk_bf16_f32 v{vB+1}, v{vA0+2}, v{vA0+3}")
    A("@ENDAUTO")
    A(f"  buffer_store_dwordx2 v[{vB}:{vB+1}], v6, s[12:15], s27 offen {spol}")
    if stamps:
        A("  s_add_u32 s3, s3, 1")
        A("  s_waitcnt vmcnt(0)")
        A("L_stamp:")
        A("  s_memrealtime s[42:43]")
        A("  s_getreg_b32 s46, hwreg(HW_REG_XCC_ID)")
        A("  s_getreg_b32 s47, hwreg(HW_REG_HW_ID)")
        A("  s_mul_i32 s30, s54, 5\n  s_add_u32 s30, s30, s3\n  s_lshl_b32 s30, s30, 4")
        A("  s_waitcnt lgkmcnt(0)")
        A("  v_mov_b32 v4, s40\n  v_mov_b32 v5, s42\n  v_mov_b32 v6, s46\n  v_mov_b32 v7, s47\n  v_mov_b32 v1, s30")
        A("  s_mov_b64 exec, 1")
        A("  global_store_dwordx4 v1, v[4:7], s[44:45]")
    A("L_end:")
    A("  s_endpgm")
    A('.section .rodata,"a"\n.p2align 6')
    A(f".amdhsa_kernel {KN}")
    A("  .amdhsa_next_free_vgpr 248\n  .amdhsa_next_free_sgpr 56\n  .amdhsa_accum_offset 248")
    A("  .amdhsa_group_segment_fixed_size 0\n  .amdhsa_kernarg_size 48\n  .amdhsa_user_sgpr_count 2")
    A("  .amdhsa_user_sgpr_kernarg_segment_ptr 1\n  .amdhsa_system_sgpr_workgroup_id_x 1\n.end_amdhsa_kernel")
    return place_pads("\n".join(L).split("\n"), pads, padgap)

def place_pads(lines, pads, gap):
    out, chains, auto, n, idx = [], {0: [], 1: []}, None, 0, False
    for ln in lines:
        if ln.startswith("@AUTO"):
            auto, n = int(ln[5:]), gap
            continue
        if ln == "@ENDAUTO":
            auto = None
            continue
        if ln == "@PADL":
            chains[0].append(len(out)); out.append(None)
            continue
        if auto is not None and ln.startswith("  "):
            if n >= gap and not idx and not ln.startswith(("  s_cselect", "  s_cbranch")):
                chains[auto].append(len(out)); out.append(None); n = 0
            n += 1
            if "s_set_gpr_idx_on" in ln: idx = True
            if "s_set_gpr_idx_off" in ln: idx = False
        out.append(ln)
    res = {}
    parts = {}
    for ch, pos in chains.items():
        if ch == 0:
            pos = pos[2:] + pos[:2]
        per = -(-len(pos) // 4)
        parts[ch] = [pos[k*per:(k+1)*per] for k in range(4)]
        for k, sub in enumerate(parts[ch]):
            for j, p in enumerate(sub):
                nxt = f"L_pad{ch}_{k}_{j+1}" if j + 1 < len(sub) else f"L_warm{ch}_ret"
                res[p] = f"L_pad{ch}_{k}_{j}:\n  s_cbranch_execz {nxt}"
    fin = []
    for i, ln in enumerate(out):
        if ln is None:
            if pads > (1 if "L_pad1" in res[i] else 0): fin.append(res[i])
        elif ln.startswith("@WARM"):
            ch = int(ln[5:])
            if pads <= ch: continue
            if ch == 1:
                fin.append("  s_cmp_lg_u32 s26, 12\n  s_cbranch_scc1 L_warm1_skip")
            fin.append("  s_mov_b64 exec, 0")
            for k in range(3):
                if parts[ch][k]:
                    fin.append(f"  s_cmp_eq_u32 s3, {k}\n  s_cbranch_scc1 L_pad{ch}_{k}_0")
            if parts[ch][3]:
                fin.append(f"  s_branch L_pad{ch}_3_0")
            fin.append(f"L_warm{ch}_ret:\n  s_mov_b64 exec, -1")
            if ch == 1:
                fin.append("L_warm1_skip:")
        else:
            fin.append(ln)
    return "\n".join(fin) + "\n"

if __name__ == "__main__":
    out = sys.argv[1]
    kw = {}
    for kv in sys.argv[2:]:
        a, b = kv.split("=")
        kw[a] = b.replace("+", " ") if a in ("pol", "spol", "W", "pat") else int(b)
    open(out, "w").write(gen(**kw))
```

```python
import sys, struct, re

KN = "standalone__gqa_softmax__sampling_kernel"
HEADER = """; Kernarg layout for this problem (48 bytes, ptrs only, base s[0:1]):
"""

def f2u(x):
    return struct.unpack("<I", struct.pack("<f", x))[0]

def gen(W="20", pol="nt", spol="", stamps=0, prio=0, perm=0, rev=1, pads=0, R=3, padgap=7, tail=1, vpre=1, pat="13.15"):
    L = []
    A = L.append
    SLOT = 32768
    STAT = R * SLOT
    lds = STAT + 2048
    Ws = [int(x) for x in str(W).split(".")]
    Ws = (Ws * 4)[:4]
    Wmax = max(Ws)
    assert Wmax <= 32
    barg = (Wmax + 3) // 4 - 1
    C = (128 ** -0.5) * 1.4426950408889634
    A(HEADER.rstrip())
    if stamps:
        A("; stamps=1280")
    if stamps == 2:
        A("; prof=34")
    A(f"; @launch grid=(256,1,1) block=(320,1,1) lds={lds}")
    A('.amdgcn_target "amdgcn-amd-amdhsa--gfx950"')
    A(".text")
    A(f".globl {KN}\n.p2align 8\n.type {KN},@function\n{KN}:")
    A("  s_load_dwordx4 s[4:7], s[0:1], 8          ; K, V")
    if stamps:
        A("  s_memrealtime s[40:41]")
        A("  s_load_dwordx2 s[44:45], s[0:1], 40")
        A("  s_mov_b32 s54, s2")
    A("  v_lshrrev_b32 v1, 6, v0")
    A("  s_lshr_b32 s3, s2, 8")
    A("  s_cbranch_scc1 L_end")
    A("  v_readfirstlane_b32 s3, v1")
    A("  v_bfe_u32 v2, v0, 4, 2                    ; g = lane >> 4")
    A("  v_and_b32 v3, 15, v0                      ; i = lane & 15")
    if perm == 1:
        A("  s_and_b32 s20, s2, 7\n  s_lshl_b32 s20, s20, 5\n  s_lshr_b32 s2, s2, 3\n  s_or_b32 s2, s2, s20")
    elif perm == 2:
        A("  s_xor_b32 s2, s2, 2")
    elif perm == 3:
        A("  s_lshr_b32 s20, s2, 3\n  s_and_b32 s20, s20, 7\n  s_xor_b32 s2, s2, s20")
    elif perm == 5:
        A("  s_mul_i32 s2, s2, 37\n  s_and_b32 s2, s2, 255\n  s_lshr_b32 s20, s2, 4\n  s_xor_b32 s2, s2, s20")
    A("  s_cmp_lg_u32 s3, 0")
    A("  s_cbranch_scc1 L_consumer")

    if prio:
        A(f"  s_setprio {prio}")
    A("  v_xor_b32 v4, v2, v3")
    A("  v_lshlrev_b32 v4, 4, v4")
    A("  v_lshl_add_u32 v8, v2, 8, v4")
    if pat:
        b0, b1 = (int(x) for x in pat.split("."))
        hop = [0, (1 << b0) - 1024, (1 << b1) - 2048, (1 << b0) + (1 << b1) - 3072]
        holes = (1 << b0) | (1 << b1)
        for n in range(1, 4):
            A(f"  v_xor_b32 v{8+n}, {hex(hop[n] | 64*n)}, v8")
        A(f"  s_lshl_b32 s29, {holes >> min(b0, b1)}, {min(b0, b1)}")
    else:
        A("  v_xor_b32 v9, 64, v8")
        A("  s_movk_i32 s22, 0x80")
        A("  v_xor_b32 v10, s22, v8")
        A("  v_xor_b32 v11, s22, v9")
    A("  s_lshl_b32 s20, s2, 20")
    A("  s_lshl_b32 s10, 1, 20")
    A("  s_lshl_b32 s11, 1, 17")
    A("  s_mov_b32 m0, 0")
    A("  s_mov_b32 s23, 0")
    A("  s_mov_b32 s28, 0")
    A(f"  s_mov_b32 s30, {8 + barg}")
    A(f"  s_mov_b32 s31, {R*SLOT}")
    A("  s_movk_i32 s33, 0x100")
    if stamps == 2:
        A("  s_mov_b32 s52, 1")
    A("  s_waitcnt lgkmcnt(0)")
    if stamps == 2:
        A("  v_mov_b32 v20, s40")
    A("  s_add_u32 s8, s4, s20")
    A("  s_addc_u32 s9, s5, 0")
    def prof():
        A("  s_memrealtime s[50:51]")
        A("  s_waitcnt lgkmcnt(0)")
        A("  v_cmp_eq_u32 vcc, s52, v0")
        A("  v_mov_b32 v21, s50")
        A("  s_add_u32 s52, s52, 1")
        A("  v_cndmask_b32 v20, v20, v21, vcc")
    A("L_load_loop:")
    if stamps == 2:
        A("  s_and_b32 s53, s28, 15\n  s_cbranch_scc1 L_noprof")
        prof()
        A("L_noprof:")
    for i in range(4):
        A(f"  s_waitcnt vmcnt({Ws[i]-1})")
        A(f"  buffer_load_dwordx4 v{8+i}, s[8:11], s23 offen offset:{i*1024} {pol} lds")
    A("  s_cmp_lg_u32 s28, s30")
    A("  s_cbranch_scc1 L_load_nobar")
    A("  s_barrier")
    A("  s_add_u32 s30, s30, 8")
    A("L_load_nobar:")
    A("  s_addk_i32 m0, 0x1000")
    A("  s_add_u32 s28, s28, 1")
    A("  s_cmp_eq_u32 m0, s31")
    A("  s_cselect_b32 m0, 0, m0")
    if pat:
        A("  s_or_b32 s23, s23, s29")
        A("  s_addk_i32 s23, 0x400")
        A("  s_andn2_b32 s23, s23, s29")
    elif rev:
        A("  s_brev_b32 s23, s28")
        A("  s_lshr_b32 s23, s23, 29")
        A("  s_and_b32 s22, s28, 0xf8")
        A("  s_or_b32 s23, s23, s22")
        A("  s_lshl_b32 s23, s23, 12")
    else:
        A("  s_addk_i32 s23, 0x1000")
    A("  s_cmp_lg_u32 s28, s33")
    A("  s_cbranch_scc1 L_load_loop")
    A("@PADL")
    A("  s_bitcmp1_b32 s28, 9")
    A("  s_cbranch_scc1 L_load_done")
    A("  v_lshlrev_b32 v4, 1, v2")
    A("  v_xor_b32 v4, v4, v3")
    A("  v_lshlrev_b32 v4, 4, v4")
    A("  v_lshl_add_u32 v8, v2, 8, v4")
    A(f"  v_xor_b32 v9, {hex((hop[1] if pat else 0) | 0x80)}, v8")
    A("  s_add_u32 s8, s6, s20")
    A("  s_addc_u32 s9, s7, 0")
    A("@PADL")
    if pat:
        A(f"  v_xor_b32 v10, {hex(hop[2])}, v8")
        A(f"  v_xor_b32 v11, {hex(hop[3] | 0x80)}, v8")
    else:
        A("  v_mov_b32 v10, v8")
        A("  v_mov_b32 v11, v9")
    A("  s_mov_b32 s23, 0")
    A("  s_movk_i32 s33, 0x200")
    A("  s_branch L_load_loop")
    A("L_load_done:")
    if tail:
        A("  s_barrier")
        A("  s_waitcnt vmcnt(8)")
        A("  s_barrier")
    A("  s_waitcnt vmcnt(0)")
    A("  s_barrier")
    if stamps == 2:
        prof()
        A("  s_lshl_b32 s53, s54, 8")
        A("  s_add_u32 s53, s53, 0x10000")
        A("  v_lshl_add_u32 v21, v0, 2, s53")
        A("  global_store_dword v21, v20, s[44:45]")
    if stamps:
        A("  s_branch L_stamp")
    else:
        A("  s_endpgm")

    vQ = vO = 16
    vF, vAcc, vB, vX = 48, 80, 84, 88
    vM, vL, vMC, vT = 92, 93, 94, 95
    aK, aV, vS = 96, 100, 120
    A("L_consumer:")
    A("  s_load_dwordx2 s[16:17], s[0:1], 0        ; Q")
    A("  s_load_dwordx2 s[18:19], s[0:1], 24       ; out")
    A("  v_and_b32 v0, 63, v0                      ; lane")
    A("  v_lshlrev_b32 v4, 8, v3")
    A("  v_lshl_add_u32 v6, v2, 4, v4")
    A("  v_xor_b32 v7, 0x800, v6")
    A("  s_lshl_b32 s20, s2, 11")
    A("  s_movk_i32 s10, 0x800")
    A("  s_lshl_b32 s11, 1, 17")
    A("  s_sub_u32 s3, s3, 1")
    A("  s_waitcnt lgkmcnt(0)")
    A("  s_add_u32 s8, s16, s20")
    A("  s_addc_u32 s9, s17, 0")
    for h in range(2):
        for j in range(4):
            r = vQ + 16*h + 4*j
            A(f"  buffer_load_dwordx4 v[{r}:{r+3}], v{6+h}, s[8:11], 0 offen offset:{64*j}")
    A("  s_add_u32 s12, s18, s20")
    A("  s_addc_u32 s13, s19, 0")
    A("  s_movk_i32 s14, 0x800")
    A("  s_lshl_b32 s15, 1, 17")
    A("  s_lshl_b32 s24, s3, 13")
    A("  v_xor_b32 v5, v2, v3")
    A("  v_lshl_add_u32 v5, v5, 4, v4")
    A(f"  v_add_u32 v{aK}, s24, v5")
    A(f"  v_xor_b32 v{aK+1}, 64, v{aK}")
    A(f"  v_xor_b32 v{aK+2}, 0x80, v{aK}")
    A(f"  v_xor_b32 v{aK+3}, 0xc0, v{aK}")
    A(f"  v_mov_b32 v{vM}, 0xff800000")
    A("  s_mov_b32 s26, 0")
    A("  s_mov_b32 s30, 0")
    A(f"  s_mov_b32 s32, {SLOT}")
    A("@WARM0")
    A("  s_waitcnt vmcnt(0)")
    if vpre:
        A("  s_lshl_b32 s20, s2, 20")
        A("  s_add_u32 s36, s6, s20")
        A("  s_addc_u32 s37, s7, 0")
        A("  v_mov_b32 v12, 0")
        A("  global_load_dword v12, v12, s[36:37] nt")

    def ring_step():
        A("  s_add_u32 s30, s30, s32")
        A(f"  s_cmp_eq_u32 s30, {R*SLOT}")
        A("  s_cselect_b32 s30, 0, s30")
        A(f"  s_cselect_b32 s31, {hex((1 << 32) - (R-1)*SLOT)}, s32")

    A("L_k_loop:")
    A("@AUTO0")
    ring_step()
    A("  s_barrier")
    for t in range(2):
        for j in range(4):
            r = vF + 16*t + 4*j
            A(f"  ds_read_b128 v[{r}:{r+3}], v{aK+j} offset:{t*4096}")
    for j in range(4):
        A(f"  v_add_u32 v{aK+j}, s31, v{aK+j}")
    for t in range(2):
        for j in range(4):
            r = vF + 16*t + 4*j
            A(f"  s_waitcnt lgkmcnt({7 - 4*t - j})")
            c = "0" if t == 0 and j == 0 else f"v[{vAcc}:{vAcc+3}]"
            A(f"  v_mfma_f32_16x16x32_bf16 v[{vAcc}:{vAcc+3}], v[{r}:{r+3}], v[{vQ+16*t+4*j}:{vQ+16*t+4*j+3}], {c}")
    A("  s_nop 7")
    A("  s_set_gpr_idx_on s26, gpr_idx(DST)")
    for r in range(4):
        A(f"  v_mov_b32 v{vS+r}, v{vAcc+r}")
    A("  s_set_gpr_idx_off")
    A(f"  v_max3_f32 v{vM}, v{vAcc}, v{vAcc+1}, v{vM}")
    A(f"  v_max3_f32 v{vM}, v{vAcc+2}, v{vAcc+3}, v{vM}")
    A("  s_add_u32 s26, s26, 4")
    A("@ENDAUTO")
    A("@WARM1")
    A("  s_cmp_lg_u32 s26, 128")
    A("  s_cbranch_scc1 L_k_loop")

    def lane_reduce(op, v):
        A(f"  v_mov_b32 v{vT}, v{v}")
        A("  s_nop 1")
        A(f"  v_permlane32_swap_b32 v{vT}, v{v}")
        A(f"  {op} v{v}, v{vT}, v{v}")
        A(f"  v_mov_b32 v{vT}, v{v}")
        A("  s_nop 1")
        A(f"  v_permlane16_swap_b32 v{vT}, v{v}")
        A(f"  {op} v{v}, v{vT}, v{v}")
        A("  s_nop 1")
        A(f"  {op}_dpp v{v}, v{v}, v{v} row_ror:8 row_mask:0xf bank_mask:0xf")

    def make_p():
        A("  s_set_gpr_idx_on s26, gpr_idx(SRC0)")
        for r in range(4):
            A(f"  v_mov_b32 v{vX+r}, v{vS+r}")
        A("  s_set_gpr_idx_off")
        for r in range(4):
            A(f"  v_fma_f32 v{vX+r}, v{vX+r}, s25, -v{vMC}")
        for r in range(4):
            A(f"  v_exp_f32 v{vX+r}, v{vX+r}")
        A("  s_add_u32 s26, s26, 4")
        A(f"  v_cvt_pk_bf16_f32 v{vB}, v{vX}, v{vX+1}")
        A(f"  v_cvt_pk_bf16_f32 v{vB+1}, v{vX+2}, v{vX+3}")
        A(f"  v_add_f32 v{vX}, v{vX}, v{vX+1}")
        A(f"  v_add_f32 v{vX+2}, v{vX+2}, v{vX+3}")
        A(f"  v_mov_b32_dpp v{vB+2}, v{vB} row_ror:8 row_mask:0xf bank_mask:0xf")
        A(f"  v_mov_b32_dpp v{vB+3}, v{vB+1} row_ror:8 row_mask:0xf bank_mask:0xf")
        A(f"  v_add_f32 v{vL}, v{vL}, v{vX}")
        A(f"  v_add_f32 v{vL}, v{vL}, v{vX+2}")

    def v_reads():
        for db in range(8):
            for t in range(2):
                r = vF + 4*db + 2*t
                A(f"  ds_read_b64_tr_b16 v[{r}:{r+1}], v{aV+db} offset:{t*4096}")

    def pv(extra=0):
        for db in range(8):
            A(f"  s_waitcnt lgkmcnt({min(15, 14 - 2*db + extra)})")
            A(f"  v_mfma_f32_16x16x32_bf16 v[{vO+4*db}:{vO+4*db+3}], v[{vF+4*db}:{vF+4*db+3}], v[{vB}:{vB+3}], v[{vO+4*db}:{vO+4*db+3}]")

    A("@AUTO1")
    lane_reduce("v_max_f32", vM)
    A("  s_lshl_b32 s27, s3, 8")
    A(f"  s_add_u32 s27, s27, {STAT}")
    A("  v_lshl_add_u32 v8, v0, 2, s27")
    A(f"  ds_write_b32 v8, v{vM}")
    A(f"  v_lshlrev_b32 v9, 2, v0")
    A(f"  v_add_u32 v9, {STAT}, v9")
    A("  v_lshrrev_b32 v5, 2, v0")
    A("  v_and_b32 v6, 7, v5")
    A("  v_lshlrev_b32 v6, 1, v6")
    A("  v_bfe_u32 v7, v0, 1, 1")
    A("  v_xor_b32 v6, v6, v7")
    A("  v_and_b32 v7, 1, v0")
    A("  v_lshlrev_b32 v7, 3, v7")
    A("  v_lshl_add_u32 v5, v5, 8, v7")
    A("  s_add_u32 s27, s24, s30")
    A("  v_add_u32 v5, s27, v5")
    A(f"  v_lshl_add_u32 v{aV}, v6, 4, v5")
    for db in range(1, 8):
        A(f"  v_xor_b32 v{aV+db}, {32*db}, v{aV}")
    for r in range(0, 32, 2):
        A(f"  v_mov_b64 v[{vO+r}:{vO+r+1}], 0")
    A(f"  v_mov_b32 v{vL}, 0")
    A(f"  s_mov_b32 s25, {hex(f2u(C))}")
    A("  s_mov_b32 s26, 0")
    ring_step()
    A("  s_waitcnt lgkmcnt(0)")
    A("  s_barrier")
    A(f"  ds_read2st64_b32 v[{vX}:{vX+1}], v9 offset0:0 offset1:1")
    A(f"  ds_read2st64_b32 v[{vX+2}:{vX+3}], v9 offset0:2 offset1:3")
    A("  s_waitcnt lgkmcnt(0)")
    A(f"  v_max3_f32 v{vM}, v{vX}, v{vX+1}, v{vX+2}")
    A(f"  v_max_f32 v{vM}, v{vM}, v{vX+3}")
    A(f"  v_mul_f32 v{vMC}, s25, v{vM}")
    make_p()
    A("  s_branch L_v_entry")
    A("; ---- V phase")
    A("L_v_loop:")
    ring_step()
    A("  s_barrier")
    A("L_v_entry:")
    v_reads()
    for db in range(8):
        A(f"  v_add_u32 v{aV+db}, s31, v{aV+db}")
    pv()
    make_p()
    A("  s_cmp_lg_u32 s26, 128")
    A("  s_cbranch_scc1 L_v_loop")

    if not tail:
        A("; ---- last V slot, row sums, cross-wave reduction")
        lane_reduce("v_add_f32", vL)
        A(f"  ds_write_b32 v8, v{vL} offset:1024")
        XCH = ((61 % R)) * SLOT
        A("  s_lshl_b32 s27, s3, 12")
        A(f"  s_add_u32 s27, s27, {XCH}")
        A("  v_lshl_add_u32 v10, v0, 4, s27")
        A("  s_lshl_b32 s27, s3, 10")
        A(f"  s_add_u32 s27, s27, {XCH}")
        A("  v_lshl_add_u32 v11, v0, 4, s27")
        A("  v_and_b32 v6, 7, v3")
        A("  v_lshlrev_b32 v6, 8, v6")
        A("  v_lshl_add_u32 v6, v2, 3, v6")
        A("  v_lshrrev_b32 v7, 3, v3")
        A("  v_lshl_add_u32 v6, v7, 5, v6")
        A("  s_lshl_b32 s27, s3, 6")
        A("  s_waitcnt lgkmcnt(0)")
        A("  s_barrier")
        v_reads()
        A(f"  ds_read2st64_b32 v[{vX}:{vX+1}], v9 offset0:4 offset1:5")
        A(f"  ds_read2st64_b32 v[{vX+2}:{vX+3}], v9 offset0:6 offset1:7")
        pv(2)
        A("  s_waitcnt lgkmcnt(0)")
        A(f"  v_add_f32 v{vX}, v{vX}, v{vX+1}")
        A(f"  v_add_f32 v{vX+2}, v{vX+2}, v{vX+3}")
        A(f"  v_add_f32 v{vX}, v{vX}, v{vX+2}")
        A(f"  v_rcp_f32 v{vL}, v{vX}")
        for u in range(4):
            for r in range(4):
                A(f"  v_mov_b32_dpp v{vO+8*u+r}, v{vO+8*u+4+r} row_ror:8 row_mask:0xf bank_mask:0xc")
            A(f"  ds_write_b128 v10, v[{vO+8*u}:{vO+8*u+3}] offset:{1024*u}")
        A("  s_waitcnt lgkmcnt(0)")
        A("  s_barrier")
        for w in range(4):
            A(f"  ds_read_b128 v[{vF+4*w}:{vF+4*w+3}], v11 offset:{4096*w}")
        A("  s_waitcnt lgkmcnt(2)")
        for r in range(4):
            A(f"  v_add_f32 v{vF+r}, v{vF+r}, v{vF+4+r}")
        A("  s_waitcnt lgkmcnt(0)")
        for r in range(4):
            A(f"  v_add_f32 v{vF+8+r}, v{vF+8+r}, v{vF+12+r}")
        for r in range(4):
            A(f"  v_add_f32 v{vF+r}, v{vF+r}, v{vF+8+r}")
        for r in range(4):
            A(f"  v_mul_f32 v{vF+r}, v{vF+r}, v{vL}")
        A(f"  v_cvt_pk_bf16_f32 v{vB}, v{vF}, v{vF+1}")
        A(f"  v_cvt_pk_bf16_f32 v{vB+1}, v{vF+2}, v{vF+3}")
    else:
        XCH = (61 % R) * SLOT
        PX = XCH + 16384
        vP, vA0, vA1 = 104, 80, 88
        A("  s_lshl_b32 s27, s3, 10")
        A(f"  s_add_u32 s27, s27, {XCH}")
        A("  v_lshl_add_u32 v11, v0, 4, s27")
        A(f"  ds_write_b128 v11, v[{vB}:{vB+3}] offset:16384")
        lane_reduce("v_add_f32", vL)
        A(f"  ds_write_b32 v8, v{vL} offset:1024")
        A("  s_lshl_b32 s27, s3, 12")
        A(f"  s_add_u32 s27, s27, {XCH}")
        A("  v_lshl_add_u32 v10, v0, 4, s27")
        for u in range(4):
            for r in range(4):
                A(f"  v_mov_b32_dpp v{vO+8*u+r}, v{vO+8*u+4+r} row_ror:8 row_mask:0xf bank_mask:0xc")
            A(f"  ds_write_b128 v10, v[{vO+8*u}:{vO+8*u+3}] offset:{1024*u}")
        A(f"  v_subrev_u32 v4, s24, v{aV}")
        A("  s_lshl_b32 s27, s3, 6")
        A("  v_xor_b32 v4, s27, v4")
        A("  v_xor_b32 v5, 32, v4")
        A("  v_lshlrev_b32 v7, 4, v0")
        A(f"  v_add_u32 v7, {PX}, v7")
        A("  s_waitcnt lgkmcnt(0)")
        A("  s_barrier")
        for w in range(4):
            A(f"  ds_read_b128 v[{vF+4*w}:{vF+4*w+3}], v11 offset:{4096*w}")
        A(f"  ds_read2st64_b32 v[{vO}:{vO+1}], v9 offset0:4 offset1:5")
        A(f"  ds_read2st64_b32 v[{vO+2}:{vO+3}], v9 offset0:6 offset1:7")
        for w in range(4):
            A(f"  ds_read_b128 v[{vP+4*w}:{vP+4*w+3}], v7 offset:{1024*w}")
        A("  v_and_b32 v6, 7, v3")
        A("  v_lshlrev_b32 v6, 8, v6")
        A("  v_lshl_add_u32 v6, v2, 3, v6")
        A("  v_lshrrev_b32 v10, 3, v3")
        A("  v_lshl_add_u32 v6, v10, 5, v6")
        A("  s_waitcnt lgkmcnt(4)")
        for r in range(4):
            A(f"  v_add_f32 v{vF+r}, v{vF+r}, v{vF+4+r}")
        for r in range(4):
            A(f"  v_add_f32 v{vF+8+r}, v{vF+8+r}, v{vF+12+r}")
        for r in range(4):
            A(f"  v_add_f32 v{vA0+r}, v{vF+r}, v{vF+8+r}")
        A(f"  v_add_f32 v{vO}, v{vO}, v{vO+1}")
        A(f"  v_add_f32 v{vO+2}, v{vO+2}, v{vO+3}")
        for r in range(4):
            A(f"  v_mov_b32_dpp v{vA1+r}, v{vA0+r} row_ror:8 row_mask:0xf bank_mask:0xf")
        A(f"  v_add_f32 v{vO}, v{vO}, v{vO+2}")
        A(f"  v_rcp_f32 v{vL}, v{vO}")
        A("  s_waitcnt lgkmcnt(0)")
        def last(ks):
            A("  s_barrier")
            for k in ks:
                for h in range(2):
                    for t in range(2):
                        r = vF + 8*k + 4*h + 2*t
                        A(f"  ds_read_b64_tr_b16 v[{r}:{r+1}], v{4+h} offset:{k*8192 + t*4096}")
            n = 4 * len(ks)
            for k in ks:
                for h in range(2):
                    n -= 2
                    acc = (vA0, vA1)[h]
                    r = vF + 8*k + 4*h
                    A(f"  s_waitcnt lgkmcnt({n})")
                    A(f"  v_mfma_f32_16x16x32_bf16 v[{acc}:{acc+3}], v[{r}:{r+3}], v[{vP+4*k}:{vP+4*k+3}], v[{acc}:{acc+3}]")
        last([0, 1, 2])
        last([3])
        A("  s_nop 7")
        for r in range(4):
            A(f"  v_mov_b32_dpp v{vA0+r}, v{vA1+r} row_ror:8 row_mask:0xf bank_mask:0xc")
        for r in range(4):
            A(f"  v_mul_f32 v{vA0+r}, v{vA0+r}, v{vL}")
        A(f"  v_cvt_pk_bf16_f32 v{vB}, v{vA0}, v{vA0+1}")
        A(f"  v_cvt_pk_bf16_f32 v{vB+1}, v{vA0+2}, v{vA0+3}")
    A("@ENDAUTO")
    A(f"  buffer_store_dwordx2 v[{vB}:{vB+1}], v6, s[12:15], s27 offen {spol}")
    if stamps:
        A("  s_add_u32 s3, s3, 1")
        A("  s_waitcnt vmcnt(0)")
        A("L_stamp:")
        A("  s_memrealtime s[42:43]")
        A("  s_getreg_b32 s46, hwreg(HW_REG_XCC_ID)")
        A("  s_getreg_b32 s47, hwreg(HW_REG_HW_ID)")
        A("  s_mul_i32 s30, s54, 5\n  s_add_u32 s30, s30, s3\n  s_lshl_b32 s30, s30, 4")
        A("  s_waitcnt lgkmcnt(0)")
        A("  v_mov_b32 v4, s40\n  v_mov_b32 v5, s42\n  v_mov_b32 v6, s46\n  v_mov_b32 v7, s47\n  v_mov_b32 v1, s30")
        A("  s_mov_b64 exec, 1")
        A("  global_store_dwordx4 v1, v[4:7], s[44:45]")
    A("L_end:")
    A("  s_endpgm")
    A('.section .rodata,"a"\n.p2align 6')
    A(f".amdhsa_kernel {KN}")
    A("  .amdhsa_next_free_vgpr 248\n  .amdhsa_next_free_sgpr 56\n  .amdhsa_accum_offset 248")
    A("  .amdhsa_group_segment_fixed_size 0\n  .amdhsa_kernarg_size 48\n  .amdhsa_user_sgpr_count 2")
    A("  .amdhsa_user_sgpr_kernarg_segment_ptr 1\n  .amdhsa_system_sgpr_workgroup_id_x 1\n.end_amdhsa_kernel")
    return place_pads("\n".join(L).split("\n"), pads, padgap)

def place_pads(lines, pads, gap):
    out, chains, auto, n, idx = [], {0: [], 1: []}, None, 0, False
    for ln in lines:
        if ln.startswith("@AUTO"):
            auto, n = int(ln[5:]), gap
            continue
        if ln == "@ENDAUTO":
            auto = None
            continue
        if ln == "@PADL":
            chains[0].append(len(out)); out.append(None)
            continue
        if auto is not None and ln.startswith("  "):
            if n >= gap and not idx and not ln.startswith(("  s_cselect", "  s_cbranch")):
                chains[auto].append(len(out)); out.append(None); n = 0
            n += 1
            if "s_set_gpr_idx_on" in ln: idx = True
            if "s_set_gpr_idx_off" in ln: idx = False
        out.append(ln)
    res = {}
    parts = {}
    for ch, pos in chains.items():
        if ch == 0:
            pos = pos[2:] + pos[:2]
        per = -(-len(pos) // 4)
        parts[ch] = [pos[k*per:(k+1)*per] for k in range(4)]
        for k, sub in enumerate(parts[ch]):
            for j, p in enumerate(sub):
                nxt = f"L_pad{ch}_{k}_{j+1}" if j + 1 < len(sub) else f"L_warm{ch}_ret"
                res[p] = f"L_pad{ch}_{k}_{j}:\n  s_cbranch_execz {nxt}"
    fin = []
    for i, ln in enumerate(out):
        if ln is None:
            if pads > (1 if "L_pad1" in res[i] else 0): fin.append(res[i])
        elif ln.startswith("@WARM"):
            ch = int(ln[5:])
            if pads <= ch: continue
            if ch == 1:
                fin.append("  s_cmp_lg_u32 s26, 12\n  s_cbranch_scc1 L_warm1_skip")
            fin.append("  s_mov_b64 exec, 0")
            for k in range(3):
                if parts[ch][k]:
                    fin.append(f"  s_cmp_eq_u32 s3, {k}\n  s_cbranch_scc1 L_pad{ch}_{k}_0")
            if parts[ch][3]:
                fin.append(f"  s_branch L_pad{ch}_3_0")
            fin.append(f"L_warm{ch}_ret:\n  s_mov_b64 exec, -1")
            if ch == 1:
                fin.append("L_warm1_skip:")
        else:
            fin.append(ln)
    return "\n".join(fin) + "\n"

if __name__ == "__main__":
    out = sys.argv[1]
    kw = {}
    for kv in sys.argv[2:]:
        a, b = kv.split("=")
        kw[a] = b.replace("+", " ") if a in ("pol", "spol", "W", "pat") else int(b)
    open(out, "w").write(gen(**kw))
```

```python
import gen3
def diag(stat, base, amp, **kw):
    s = gen3.gen(**kw)
    s = s.replace("  v_lshrrev_b32 v1, 6, v0\n", "  s_memrealtime s[40:41]\n  s_load_dwordx2 s[44:45], s[0:1], 32\n  v_lshrrev_b32 v1, 6, v0\n", 1)
    def wait(lbl, expr):
        return f"{lbl}:\n  s_sleep 1\n  s_memrealtime s[46:47]\n  s_waitcnt lgkmcnt(0)\n  s_sub_u32 s46, s46, s40\n  s_cmp_lt_u32 s46, {expr}\n  s_cbranch_scc1 {lbl}\n"
    fin = "  s_waitcnt vmcnt(0)\n  s_memrealtime s[42:43]\n  s_cmp_lg_u32 s3, 0\n  s_cbranch_scc1 L_end\n" + wait("L_w1", 8600)
    if stat == "mean":
        fin += "  s_sub_u32 s48, s42, s40\n  s_atomic_add s48, s[44:45], 0\n"
    elif stat == "span":
        fin += "  s_mov_b32 s48, s42\n  s_atomic_umax s48, s[44:45], 0\n  s_not_b32 s49, s40\n  s_atomic_umax s49, s[44:45], 4\n"
    elif stat == "skew":
        fin += "  s_mov_b32 s48, s40\n  s_atomic_umax s48, s[44:45], 0\n  s_not_b32 s49, s40\n  s_atomic_umax s49, s[44:45], 4\n"
    elif stat == "spread":
        fin += "  s_mov_b32 s48, s42\n  s_atomic_umax s48, s[44:45], 0\n  s_not_b32 s49, s42\n  s_atomic_umax s49, s[44:45], 4\n"
    fin += "  s_waitcnt lgkmcnt(0)\n" + wait("L_w2", 10200)
    fin += "  s_mov_b64 s[48:49], 0\n  s_atomic_add_x2 s[48:49], s[44:45], 0 glc\n  s_waitcnt lgkmcnt(0)\n"
    if stat == "mean":
        fin += "  s_lshr_b32 s48, s48, 8\n"
    else:
        fin += "  s_not_b32 s49, s49\n  s_sub_u32 s48, s48, s49\n"
    fin += f"  s_sub_i32 s48, s48, {base}\n  s_mul_i32 s48, s48, {amp}\n  s_add_i32 s48, s48, 12000\n  s_max_i32 s48, s48, 11000\n  s_min_i32 s48, s48, 40000\n"
    fin += wait("L_w3", "s48")
    return s.replace("L_end:\n", fin + "L_end:\n")
if __name__ == "__main__":
    for name, kw in (("old", dict(W="19.20", pat="")), ("new", dict(W="20"))):
        open(f"../var/dx_{name}_mean.s", "w").write(diag("mean", 6800, 10, **kw))
        open(f"../var/dx_{name}_span.s", "w").write(diag("span", 7000, 10, **kw))
        open(f"../var/dx_{name}_skew.s", "w").write(diag("skew", 0, 10, **kw))
        open(f"../var/dx_{name}_spread.s", "w").write(diag("spread", 0, 10, **kw))
```
